```python
import torch

def _softmax(x, axis=-1):
    return torch.softmax(x, dim=axis)
def _gelu(x):
    return torch.nn.functional.gelu(x, approximate="tanh")
def _silu(x):
    return torch.nn.functional.silu(x)
def _sigmoid(x):
    return torch.sigmoid(x)
def _layernorm(x, axis=-1, eps=1e-5):
    m = x.mean(dim=axis, keepdim=True)
    v = x.var(dim=axis, keepdim=True, unbiased=False)
    return (x - m) / torch.sqrt(v + eps)
def _scatter_add(tgt, idx, src, axis=0):
    return tgt.clone().index_add_(axis, idx, src)
def _segment_sum(src, seg, n):
    out = torch.zeros((n,) + src.shape[1:], dtype=src.dtype)
    return out.index_add_(0, seg, src)
def _pad(x, pw):
    flat = tuple(v for pair in reversed(pw) for v in pair)
    return torch.nn.functional.pad(x, flat)

kernel_name = 'concat_heads__grouped_kv_mqa__spectral_fnet__prompt'

def setup_inputs():

    _w = (lambda a: (lambda t: t.to(torch.bfloat16) if t.is_floating_point() else t)(torch.as_tensor(a)))
    def _A_setup():
        B, S, D, H = 1, 2048, 576, 32
        Dh = D // H
        return {
            "x": _w((lambda *s: torch.randn(*s, dtype=torch.bfloat16) * 0.05)(B, S, D)),
            "wq": _w((lambda *s: torch.randn(*s, dtype=torch.bfloat16) * 3.2)(D, H * Dh)),
            "wk": _w((lambda *s: torch.randn(*s, dtype=torch.bfloat16) * 3.2)(D, Dh)),
            "wv": _w((lambda *s: torch.randn(*s, dtype=torch.bfloat16) * 0.4)(D, Dh)),
            "wo": _w((lambda *s: torch.randn(*s, dtype=torch.bfloat16) * 0.4)(H * Dh, D)),
        }
    _A_in = _A_setup()

    def _B_setup():
        B, S, D = 1, 2048, 576
        ns = torch.arange(S)[:, None] * torch.arange(S)[None, :]
        nd = torch.arange(D)[:, None] * torch.arange(D)[None, :]
        Ws_re = torch.cos(-2.0 * torch.pi * ns / S).to(float)
        Ws_im = torch.sin(-2.0 * torch.pi * ns / S).to(float)
        Wd_re = torch.cos(-2.0 * torch.pi * nd / D).to(float)
        Wd_im = torch.sin(-2.0 * torch.pi * nd / D).to(float)
        return {
            "x": _w((lambda *s: torch.randn(*s, dtype=torch.bfloat16) * 0.05)(B, S, D)),
            "dft_seq_re": _w(Ws_re),
            "dft_seq_im": _w(Ws_im),
            "dft_hid_re": _w(Wd_re),
            "dft_hid_im": _w(Wd_im),
        }
    _B_in = _B_setup()

    return {
        "A_x": _A_in["x"],
        "A_wq": _A_in["wq"],
        "A_wk": _A_in["wk"],
        "A_wv": _A_in["wv"],
        "A_wo": _A_in["wo"],
        "B_x": _B_in["x"],
        "B_dft_seq_re": _B_in["dft_seq_re"],
        "B_dft_seq_im": _B_in["dft_seq_im"],
        "B_dft_hid_re": _B_in["dft_hid_re"],
        "B_dft_hid_im": _B_in["dft_hid_im"],
    }

def reference(A_x, A_wq, A_wk, A_wv, A_wo, B_x, B_dft_seq_re, B_dft_seq_im, B_dft_hid_re, B_dft_hid_im):
    def _A_ref(x, wq, wk, wv, wo):
        B, S, D = x.shape
        H = 32
        Dh = D // H
        q = (lambda x, *d: x.permute(*d))((x @ wq).reshape(B, S, H, Dh), 0, 2, 1, 3)
        k = x @ wk
        v = x @ wv
        scores = torch.einsum("bhqd,bkd->bhqk", q, k) * (Dh ** -0.5)
        p = _softmax(scores, axis=-1)
        o = torch.einsum("bhqk,bkd->bhqd", p, v)
        return (lambda x, *d: x.permute(*d))(o, 0, 2, 1, 3).reshape(B, S, H * Dh) @ wo

    def _B_ref(x, dft_seq_re, dft_seq_im, dft_hid_re, dft_hid_im):
        a = torch.einsum("bsd,ed->bse", x, dft_hid_re)
        b = torch.einsum("bsd,ed->bse", x, dft_hid_im)
        y = torch.einsum("ts,bse->bte", dft_seq_re, a) - torch.einsum("ts,bse->bte", dft_seq_im, b)
        return y

    a = _A_ref(A_x, A_wq, A_wk, A_wv, A_wo)
    b = _B_ref(B_x, B_dft_seq_re, B_dft_seq_im, B_dft_hid_re, B_dft_hid_im)
    return torch.concatenate([a, b], axis=-1)
```

```python
import re
REG = re.compile(r"\b([vsa])\[(\d+):(\d+)\]|\b([vsa])(\d+)\b|\b(vcc_lo|vcc_hi|vcc|exec_lo|exec_hi|exec|m0)\b")
TRANS = ("v_exp_", "v_log_", "v_rcp_", "v_rsq_", "v_sqrt_", "v_sin_", "v_cos_")

def regs(tok):
    out = set()
    for m in REG.finditer(tok):
        if m.group(1):
            out |= {(m.group(1), i) for i in range(int(m.group(2)), int(m.group(3)) + 1)}
        elif m.group(4):
            out.add((m.group(4), int(m.group(5))))
        else:
            n = m.group(6)
            if n.startswith("vcc"): out.add(("vcc", 0))
            elif n.startswith("exec"): out.add(("exec", 0))
            else: out.add(("m0", 0))
    return out

class I:
    def __init__(s, text):
        s.text = text
        t = text.split(";")[0].strip()
        s.mn = t.split()[0]
        rest = t[len(s.mn):]
        ops = [o.strip() for o in rest.split(",")]
        s.ops = ops
        mn = s.mn
        s.mfma = mn.startswith("v_mfma")
        s.valu = mn.startswith("v_") and not s.mfma
        s.trans = mn.startswith(TRANS)
        s.vmem = mn.startswith(("buffer_", "global_"))
        s.ds = mn.startswith("ds_")
        s.salu = mn.startswith("s_")
        s.w, s.r = set(), set()
        s.states = 1
        if mn == "s_nop": s.states = int(ops[0], 0) + 1
        if s.mfma:
            s.w = regs(ops[0]); s.ab = regs(ops[1]) | regs(ops[2]); s.c = regs(ops[3]); s.r = s.ab | s.c
            s.passes = 8 if "32x32" in mn else 4
        elif s.valu:
            if "permlane" in mn and "swap" in mn:
                s.w = regs(ops[0]) | regs(ops[1]); s.r = set(s.w)
            else:
                s.w = regs(ops[0])
                for o in ops[1:]: s.r |= regs(o)
                if mn.startswith(("v_fmac", "v_mac")): s.r |= s.w
        elif s.vmem:
            allr = [regs(o) for o in ops]
            if "store" in mn or "atomic" in mn:
                for x in allr: s.r |= x
                s.data = allr[0]
            elif " lds" in t:
                for x in allr: s.r |= x
                s.r.add(("m0", 0))
            else:
                s.w = allr[0]
                for x in allr[1:]: s.r |= x
        elif s.ds:
            allr = [regs(o) for o in ops]
            if "read" in mn or "permute" in mn or "swizzle" in mn or "rtn" in mn:
                s.w = allr[0]
                for x in allr[1:]: s.r |= x
            else:
                for x in allr: s.r |= x
        elif s.salu:
            if mn.startswith(("s_cmp", "s_cbranch", "s_branch", "s_waitcnt", "s_barrier", "s_nop", "s_endpgm", "s_sleep", "s_setprio")):
                for o in ops: s.r |= regs(o)
            else:
                s.w = regs(ops[0])
                for o in ops[1:]: s.r |= regs(o)

def need(p, c):
    n = 0
    sw = {x for x in p.w if x[0] in ("s", "vcc")}
    vw = {x for x in p.w if x[0] in ("v", "a")}
    if p.valu:
        if c.valu or c.mfma:
            if sw & c.r: n = max(n, 2)
        if c.vmem and (sw & c.r): n = max(n, 5)
        if c.valu and c.mn.startswith(("v_readfirstlane", "v_readlane")) and (vw & c.r): n = max(n, 1)
        if c.valu and "permlane" in c.mn and (vw & c.r): n = max(n, 2)
        if c.valu and "dpp" in c.text and (vw & c.r): n = max(n, 2)
        if p.trans and c.valu and not c.trans and (vw & c.r): n = max(n, 1)
        if p.trans and (c.vmem or c.ds) and (vw & c.r): n = max(n, 1)
        if c.mfma and (vw & c.r): n = max(n, 2)
    if p.mfma:
        big = 12 if p.passes == 8 else 8
        if c.mfma:
            if p.w & c.ab: n = max(n, big)
            if (p.w & c.c) and not (p.w == c.c and p.passes == c.passes): n = max(n, big - 2)
            if (p.w & c.w) and not (p.w == c.c): n = max(n, 0)
        elif (c.valu or c.vmem or c.ds) and (p.w & (c.r | c.w)): n = max(n, big)
        if c.valu and (p.c & c.w): n = max(n, 7 if p.passes == 8 else 3)
    if p.vmem and ("store_dwordx4" in p.mn or "store_dwordx3" in p.mn):
        if (c.valu or c.mfma) and (p.data & c.w): n = max(n, 2)
        elif p.data & c.w: n = max(n, 1)
    if p.salu and ("m0", 0) in p.w and c.vmem and ("m0", 0) in c.r: n = max(n, 1)
    return n

def pad(lines, verbose=False):
    total = 0
    while True:
        ins, idx, labels = [], [], {}
        for k, ln in enumerate(lines):
            t = ln.split(";")[0].strip()
            if not t or t.startswith("."): continue
            if t.endswith(":"):
                labels[t[:-1]] = len(ins); continue
            if not ln.startswith("    "): continue
            ins.append(I(t)); idx.append(k)
        preds = [[] for _ in range(len(ins) + 1)]
        for i, x in enumerate(ins):
            if x.mn in ("s_branch",) or x.mn.startswith("s_cbranch"):
                preds[labels[x.ops[0]]].append(i)
            if x.mn not in ("s_branch", "s_endpgm"):
                preds[i + 1].append(i)
        fix = None
        for i, c in enumerate(ins):
            if c.salu and not c.r: continue
            worst = 0
            stack = [(p, 0) for p in preds[i]]
            seen = {}
            while stack:
                j, d = stack.pop()
                if j in seen and seen[j] <= d: continue
                seen[j] = d
                n = need(ins[j], c)
                if n > d: worst = max(worst, n - d)
                d2 = d + ins[j].states
                if d2 < 12:
                    stack += [(p, d2) for p in preds[j]]
            if worst:
                fix = (i, worst); break
        if not fix: break
        i, wst = fix
        if verbose: print("pad", wst, "before", ins[i].text)
        lines.insert(idx[i], f"    s_nop {wst-1}")
        total += 1
    return total
```

```python
import sys, math, struct

WS_Q, WS_KV, WS_O, WS_XF, WS_AB, WS_END = 0, 0x240000, 0x280000, 0x4C0000, 0x610000, 0x760000
KVT = 2368
HUGE = 0x40000000

def f32bits(x): return struct.unpack("<I", struct.pack("<f", x))[0]
QSCALE = f32bits(1.4426950408889634 / math.sqrt(18.0))

class E:
    def __init__(s): s.l = []
    def __call__(s, x):
        for ln in x.strip("\n").split("\n"):
            s.l.append("    " + ln.strip())
    def lab(s, x): s.l.append(x + ":")
    def raw(s, x): s.l.append(x)
    def text(s): return "\n".join(s.l) + "\n"

def vr(a, n): return f"v[{a}:{a+n-1}]"
def sr(a, n): return f"s[{a}:{a+n-1}]"

def srd(e, d, b, size):
    e(f"s_mov_b32 s{d}, s{b}\ns_mov_b32 s{d+1}, s{b+1}\ns_mov_b32 s{d+2}, {size:#x}\ns_mov_b32 s{d+3}, 0x00020000")

def kernel_head(e, name):
    e.raw(f".globl {name}\n.p2align 8\n.type {name},@function\n{name}:")

def kernel_desc(name, vgpr):
    return f""".p2align 6
.amdhsa_kernel {name}
  .amdhsa_next_free_vgpr {vgpr}
  .amdhsa_next_free_sgpr 102
  .amdhsa_accum_offset {vgpr}
  .amdhsa_group_segment_fixed_size 0
  .amdhsa_kernarg_size 104
  .amdhsa_user_sgpr_count 2
  .amdhsa_user_sgpr_kernarg_segment_ptr 1
  .amdhsa_system_sgpr_workgroup_id_x 1
.end_amdhsa_kernel
"""

XOFF, WOFF, WKOFF = 0, 73728, 156672
SX, SW, SWS, SKV, SBX, SOUT = 16, 20, 24, 28, 32, 36
S_W, S_RB, S_C, S_MX, S_MW, S_T0, S_T1, S_NB, S_RBK, S_KV, S_STG = 40, 41, 42, 43, 44, 45, 46, 47, 48, 49, 50
V_LANE, V_OX, V_OW, V_T0, V_T1, V_T2, V_T3 = 1, 2, 3, 4, 5, 6, 7

def gjob_decode(e):
    e(f"""
    v_and_b32 v{V_LANE}, 63, v0
    v_lshrrev_b32 v{V_T0}, 6, v0
    s_and_b32 s{S_T0}, s2, 7
    v_readfirstlane_b32 s{S_W}, v{V_T0}
    s_lshr_b32 s{S_T1}, s2, 3
    s_lshl_b32 s{S_RB}, s{S_T0}, 2
    s_lshr_b32 s{S_T0}, s{S_T1}, 3
    s_add_u32 s{S_RB}, s{S_RB}, s{S_T0}
    s_and_b32 s{S_C}, s{S_T1}, 7
    s_and_b32 s{S_T0}, s{S_W}, 7
    s_lshl_b32 s{S_MX}, s{S_T0}, 10
    s_lshl_b32 s{S_MW}, s{S_W}, 10
    s_add_u32 s{S_MW}, s{S_MW}, {WOFF}
    v_lshrrev_b32 v{V_T0}, 3, v{V_LANE}
    s_lshl_b32 s{S_T0}, s{S_T0}, 3
    v_add_u32 v{V_T0}, s{S_T0}, v{V_T0}
    v_lshrrev_b32 v{V_T1}, 1, v{V_T0}
    v_xor_b32 v{V_T1}, v{V_T1}, v{V_LANE}
    v_and_b32 v{V_T1}, 7, v{V_T1}
    v_lshlrev_b32 v{V_T1}, 4, v{V_T1}
    s_lshl_b32 s{S_T1}, s{S_RB}, 6
    v_add_u32 v{V_T0}, s{S_T1}, v{V_T0}
    v_mul_u32_u24 v{V_T0}, 1152, v{V_T0}
    v_add_u32 v{V_OX}, v{V_T0}, v{V_T1}
    s_lshl_b32 s{S_T0}, s{S_W}, 6
    v_add_u32 v{V_T0}, s{S_T0}, v{V_LANE}
    v_mul_u32_u24 v{V_T1}, 7282, v{V_T0}
    v_lshrrev_b32 v{V_T1}, 16, v{V_T1}
    v_mul_u32_u24 v{V_T2}, 9, v{V_T1}
    v_sub_u32 v{V_T0}, v{V_T0}, v{V_T2}
    v_lshlrev_b32 v{V_T0}, 4, v{V_T0}
    v_and_b32 v{V_T2}, 48, v{V_T1}
    v_and_b32 v{V_T3}, 3, v{V_T1}
    v_lshlrev_b32 v{V_T3}, 2, v{V_T3}
    v_or_b32 v{V_T2}, v{V_T2}, v{V_T3}
    v_lshrrev_b32 v{V_T3}, 2, v{V_T1}
    v_and_b32 v{V_T3}, 3, v{V_T3}
    v_or_b32 v{V_T2}, v{V_T2}, v{V_T3}
    v_mul_u32_u24 v{V_T2}, 1152, v{V_T2}
    v_add_u32 v{V_T0}, v{V_T0}, v{V_T2}
    s_mul_i32 s{S_T0}, s{S_C}, 144
    v_add_u32 v{V_OW}, s{S_T0}, v{V_T0}
    """)

def gjob_dma(e, xsoff=None):
    for i in range(9):
        e(f"s_add_u32 m0, s{S_MX}, {XOFF + i*8192}")
        if xsoff is None:
            e(f"s_mov_b32 s{S_T0}, {i*128}")
        else:
            e(f"s_add_u32 s{S_T0}, s{xsoff}, {i*128}")
        e(f"buffer_load_dwordx4 v{V_OX}, {sr(SX,4)}, s{S_T0} offen lds")
        e(f"s_add_u32 m0, s{S_MW}, {i*9216}")
        e(f"s_mov_b32 s{S_T1}, {i*73728}")
        e(f"buffer_load_dwordx4 v{V_OW}, {sr(SW,4)}, s{S_T1} offen lds")

V_ACC = 16
V_XB = 8
V_WA, V_A1, V_KS, V_RD, V_WRAP = 12, 13, 14, 15, 32
V_XF = 36
V_WF = 52
V_P = 68
V_ST = 76
V_STA = 33
V_ROW, V_H = 34, 35

def gjob_compute_setup(e, with_kv):
    e(f"""
    ; nb = w % 3, rbk = w / 3
    s_cmp_ge_u32 s{S_W}, 3
    s_cselect_b32 s{S_RBK}, 1, 0
    s_mul_i32 s{S_T0}, s{S_RBK}, 3
    s_sub_u32 s{S_NB}, s{S_W}, s{S_T0}
    v_and_b32 v{V_ROW}, 31, v{V_LANE}
    v_lshrrev_b32 v{V_H}, 5, v{V_LANE}
    s_lshl_b32 s{S_T0}, s{S_RBK}, 5
    v_add_u32 v{V_ROW}, s{S_T0}, v{V_ROW}
    v_lshrrev_b32 v{V_T0}, 1, v{V_ROW}
    v_and_b32 v{V_T0}, 7, v{V_T0}
    v_xor_b32 v{V_T0}, v{V_T0}, v{V_H}
    v_lshlrev_b32 v{V_T1}, 7, v{V_ROW}
    """)
    for m in range(4):
        e(f"""
        v_xor_b32 v{V_T2}, {2*m}, v{V_T0}
        v_lshlrev_b32 v{V_T2}, 4, v{V_T2}
        v_add_u32 v{V_XB+m}, v{V_T1}, v{V_T2}
        """)
    e(f"""
    v_lshrrev_b32 v{V_T0}, 2, v{V_LANE}
    v_and_b32 v{V_T0}, 3, v{V_T0}              ; i>>2
    v_lshrrev_b32 v{V_T1}, 4, v{V_LANE}
    v_and_b32 v{V_T1}, 1, v{V_T1}              ; G&1
    v_lshlrev_b32 v{V_T1}, 4, v{V_T1}
    v_and_b32 v{V_T2}, 3, v{V_LANE}
    v_lshlrev_b32 v{V_T2}, 2, v{V_T2}
    v_add_u32 v{V_T1}, v{V_T1}, v{V_T2}        ; col4 = 16*(G&1) + 4*(i&3)
    v_lshlrev_b32 v{V_T2}, 1, v{V_T0}
    v_add_u32 v{V_T2}, v{V_T2}, v{V_H}         ; 2*(i>>2) + (G>>1)
    v_mul_u32_u24 v{V_T2}, 288, v{V_T2}        ; *2*144
    v_lshlrev_b32 v{V_T3}, 1, v{V_T1}
    v_add_u32 v{V_WA}, v{V_T2}, v{V_T3}
    s_lshl_b32 s{S_T0}, s{S_NB}, 6
    s_add_u32 s{S_T0}, s{S_T0}, {WOFF}
    v_add_u32 v{V_WA}, s{S_T0}, v{V_WA}
    v_mov_b32 v{V_KS}, 2304
    v_mov_b32 v{V_RD}, 144
    v_mov_b32 v{V_WRAP}, 0
    """)
    if with_kv:
        e(f"""
        s_cmp_lt_u32 s{S_C}, 2
        s_cselect_b32 s{S_KV}, 1, 0
        s_cmp_eq_u32 s{S_NB}, 2
        s_cselect_b32 s{S_KV}, s{S_KV}, 0
        s_cmp_eq_u32 s{S_W}, 2
        s_cselect_b32 s{S_STG}, s{S_KV}, 0
        v_mul_u32_u24 v{V_STA}, 40, v{V_LANE}
        v_add_u32 v{V_STA}, {WKOFF}, v{V_STA}
        s_cmp_eq_u32 s{S_KV}, 0
        s_cbranch_scc1 K1_nokv
        v_cmp_lt_u32 vcc, 7, v{V_T1}
        v_lshlrev_b32 v{V_T2}, 3, v{V_H}
        v_add_u32 v{V_T2}, v{V_T2}, v{V_T0}        ; 8*(G>>1) + (i>>2)
        v_mul_u32_u24 v{V_T2}, 40, v{V_T2}
        v_add_u32 v{V_T2}, v{V_T2}, v{V_T3}        ; + col4*2
        v_add_u32 v{V_T2}, {WKOFF - 16}, v{V_T2}
        v_cndmask_b32 v{V_WA}, v{V_WA}, v{V_T2}, vcc
        v_mov_b32 v{V_T2}, 640
        v_cndmask_b32 v{V_KS}, v{V_KS}, v{V_T2}, vcc
        v_mov_b32 v{V_T2}, 160
        v_cndmask_b32 v{V_RD}, v{V_RD}, v{V_T2}, vcc
        v_mov_b32 v{V_T2}, -5120
        v_cndmask_b32 v{V_WRAP}, v{V_WRAP}, v{V_T2}, vcc
        """)
        e.lab("K1_nokv")
    for i in range(16):
        e(f"v_mov_b32 v{V_ACC+i}, 0")

def gjob_stage_loads(e):
    e(f"""
    s_cmp_eq_u32 s{S_STG}, 0
    s_cbranch_scc1 K1_nostage
    v_mul_u32_u24 v{V_T0}, 36, v{V_LANE}
    """)
    for i in range(9):
        b = V_ST + 10 * i
        e(f"""
        s_mov_b32 s{S_T0}, {i*2304}
        buffer_load_dwordx4 {vr(b,4)}, v{V_T0}, {sr(SKV,4)}, s{S_T0} offen
        buffer_load_dwordx4 {vr(b+4,4)}, v{V_T0}, {sr(SKV,4)}, s{S_T0} offen offset:16
        buffer_load_dword v{b+8}, v{V_T0}, {sr(SKV,4)}, s{S_T0} offen offset:32
        """)
    e.lab("K1_nostage")

def gjob_mainloop(e, with_kv, pfx):
    for i in range(9):
        e(f"s_waitcnt vmcnt({2*(8-i)})")
        if with_kv:
            b = V_ST + 10 * i
            o = (i & 1) * 2560
            e(f"""
            s_cmp_eq_u32 s{S_STG}, 0
            s_cbranch_scc1 {pfx}_nost{i}
            ds_write_b64 v{V_STA}, {vr(b,2)} offset:{o}
            ds_write_b64 v{V_STA}, {vr(b+2,2)} offset:{o+8}
            ds_write_b64 v{V_STA}, {vr(b+4,2)} offset:{o+16}
            ds_write_b64 v{V_STA}, {vr(b+6,2)} offset:{o+24}
            ds_write_b32 v{V_STA}, v{b+8} offset:{o+32}
            s_waitcnt lgkmcnt(0)
            """)
            e.lab(f"{pfx}_nost{i}")
        e("s_barrier")
        if i == 8:
            for m in range(4):
                e(f"v_add_u32 v{V_XB+m}, 0x10000, v{V_XB+m}")
        xo = (i * 8192) & 0xffff
        for ks in range(4):
            e(f"""
            ds_read_b128 {vr(V_XF+4*ks,4)}, v{V_XB+ks} offset:{XOFF+xo}
            v_add_u32 v{V_A1}, v{V_WA}, v{V_RD}
            ds_read_b64_tr_b16 {vr(V_WF+4*ks,2)}, v{V_WA}
            ds_read_b64_tr_b16 {vr(V_WF+4*ks+2,2)}, v{V_A1}
            v_add_u32 v{V_WA}, v{V_WA}, v{V_KS}
            """)
        if i & 1:
            e(f"v_add_u32 v{V_WA}, v{V_WA}, v{V_WRAP}")
        for ks in range(4):
            e(f"s_waitcnt lgkmcnt({3*(3-ks)})")
            e(f"v_mfma_f32_32x32x16_bf16 {vr(V_ACC,16)}, {vr(V_WF+4*ks,4)}, {vr(V_XF+4*ks,4)}, {vr(V_ACC,16)}")
    e("s_nop 7\ns_nop 7")

def pack16(e, acc, p):
    for j in range(8):
        e(f"v_cvt_pk_bf16_f32 v{p+j}, v{acc+2*j}, v{acc+2*j+1}")

def gen_k1(e):
    kernel_head(e, "k1_kernel")
    e(f"""
    s_cmp_ge_u32 s2, 256
    s_cbranch_scc1 K1_end
    s_load_dwordx4 s[4:7], s[0:1], 0
    s_load_dwordx4 s[8:11], s[0:1], 16
    s_load_dwordx2 s[12:13], s[0:1], 40
    s_load_dwordx2 s[14:15], s[0:1], 96
    """)
    gjob_decode(e)
    e("s_waitcnt lgkmcnt(0)")
    srd(e, SX, 4, 2359296)
    srd(e, SW, 6, 663552)
    srd(e, SWS, 14, WS_END)
    srd(e, SBX, 12, 2359296)
    e(f"""
    s_cmp_eq_u32 s{S_C}, 0
    s_cselect_b32 s{SKV}, s8, s10
    s_cselect_b32 s{SKV+1}, s9, s11
    s_mov_b32 s{SKV+2}, 20736
    s_mov_b32 s{SKV+3}, 0x00020000
    s_cmp_ge_u32 s{S_W}, 6
    s_cbranch_scc1 K1_xf
    """)
    gjob_compute_setup(e, True)
    gjob_stage_loads(e)
    gjob_dma(e)
    gjob_mainloop(e, True, "K1")
    A, P = V_ACC, V_P
    e(f"""
    s_mov_b32 s{S_T0}, {QSCALE:#x}
    s_cmp_eq_u32 s{S_NB}, 2
    s_cselect_b32 s{S_T1}, 1.0, s{S_T0}
    """)
    for i in range(16):
        e(f"v_mul_f32 v{A+i}, s{S_T0 if i < 4 else S_T1}, v{A+i}")
    pack16(e, A, P)
    e(f"""
    s_lshl_b32 s{S_T0}, s{S_RB}, 6
    v_add_u32 v{V_T0}, s{S_T0}, v{V_ROW}
    v_mul_u32_u24 v{V_T0}, 1152, v{V_T0}
    v_lshlrev_b32 v{V_T1}, 4, v{V_H}
    v_add_u32 v{V_T0}, v{V_T0}, v{V_T1}
    s_mul_i32 s{S_T0}, s{S_C}, 144
    s_lshl_b32 s{S_T1}, s{S_NB}, 6
    s_add_u32 s{S_T0}, s{S_T0}, s{S_T1}
    s_cmp_eq_u32 s{S_NB}, 2
    s_cbranch_scc1 K1_nb2
    v_permlane32_swap_b32 v{P}, v{P+2}
    v_permlane32_swap_b32 v{P+1}, v{P+3}
    v_permlane32_swap_b32 v{P+4}, v{P+6}
    v_permlane32_swap_b32 v{P+5}, v{P+7}
    buffer_store_dwordx4 {vr(P,4)}, v{V_T0}, {sr(SWS,4)}, s{S_T0} offen offset:{WS_Q}
    buffer_store_dwordx4 {vr(P+4,4)}, v{V_T0}, {sr(SWS,4)}, s{S_T0} offen offset:{WS_Q+32}
    s_branch K1_end
    """)
    e.lab("K1_nb2")
    T = V_XF
    e(f"""
    v_mov_b32 v{T}, v{P}
    v_mov_b32 v{T+1}, v{P+1}
    v_mov_b32 v{T+2}, v{P+2}
    v_mov_b32 v{T+3}, v{P+3}
    s_nop 1
    v_permlane32_swap_b32 v{T}, v{T+2}
    v_permlane32_swap_b32 v{T+1}, v{T+3}
    s_mov_b32 exec_hi, 0
    buffer_store_dwordx4 {vr(T,4)}, v{V_T0}, {sr(SWS,4)}, s{S_T0} offen offset:{WS_Q}
    s_mov_b32 exec_hi, -1
    s_cmp_eq_u32 s{S_KV}, 0
    s_cbranch_scc1 K1_end
    s_lshl_b32 s{S_T0}, s{S_RB}, 1
    s_add_u32 s{S_T0}, s{S_T0}, s{S_RBK}
    s_mul_i32 s{S_T0}, s{S_T0}, {KVT}
    s_add_u32 s{S_T0}, s{S_T0}, {WS_KV}
    s_cmp_eq_u32 s{S_C}, 1
    s_cbranch_scc1 K1_vout
    v_permlane32_swap_b32 v{P+2}, v{P+4}
    v_permlane32_swap_b32 v{P+3}, v{P+5}
    v_lshlrev_b32 v{V_T0}, 4, v{V_LANE}
    v_lshlrev_b32 v{V_T1}, 2, v{V_LANE}
    buffer_store_dwordx4 {vr(P+2,4)}, v{V_T0}, {sr(SWS,4)}, s{S_T0} offen
    s_mov_b32 exec_hi, 0
    buffer_store_dword v{P+6}, v{V_T1}, {sr(SWS,4)}, s{S_T0} offen offset:1024
    s_branch K1_end
    """)
    e.lab("K1_vout")
    e(f"""
    v_and_b32 v{V_T0}, 31, v{V_LANE}
    v_lshrrev_b32 v{V_T1}, 4, v{V_T0}
    v_mul_u32_u24 v{V_T1}, 608, v{V_T1}
    v_lshrrev_b32 v{V_T2}, 2, v{V_T0}
    v_and_b32 v{V_T2}, 1, v{V_T2}
    v_mul_u32_u24 v{V_T2}, 304, v{V_T2}
    v_add_u32 v{V_T1}, v{V_T1}, v{V_T2}
    v_and_b32 v{V_T2}, 8, v{V_T0}
    v_add_u32 v{V_T1}, v{V_T1}, v{V_T2}
    v_and_b32 v{V_T2}, 3, v{V_T0}
    v_lshlrev_b32 v{V_T2}, 1, v{V_T2}
    v_add_u32 v{V_T1}, v{V_T1}, v{V_T2}
    v_lshlrev_b32 v{V_T2}, 6, v{V_H}
    v_add_u32 v{V_T2}, v{V_T1}, v{V_T2}
    v_mul_u32_u24 v{V_T3}, 288, v{V_H}
    v_add_u32 v{V_T3}, v{V_T1}, v{V_T3}
    v_mov_b32 v{V_T0}, 0x3f80
    """)
    for g in (1, 2):
        for i4 in range(4):
            reg = P + 2 * g + (i4 >> 1)
            op = "buffer_store_short_d16_hi" if (i4 & 1) else "buffer_store_short"
            addr = V_T3 if (g == 1 and i4 == 0) else V_T2
            e(f"{op} v{reg}, v{addr}, {sr(SWS,4)}, s{S_T0} offen offset:{1152 + (8*(g-1)+i4)*16}")
    e(f"""
    s_mov_b32 exec_hi, 0
    buffer_store_short v{P+6}, v{V_T1}, {sr(SWS,4)}, s{S_T0} offen offset:{1152 + 16*16}
    buffer_store_short_d16_hi v{P+6}, v{V_T1}, {sr(SWS,4)}, s{S_T0} offen offset:{1152 + 17*16}
    buffer_store_short v{V_T0}, v{V_T1}, {sr(SWS,4)}, s{S_T0} offen offset:{1152 + 4*16}
    s_branch K1_end
    """)
    e.lab("K1_xf")
    S_S, S_R0 = 51, 52
    e(f"""
    s_lshl_b32 s{S_S}, s2, 1
    s_add_u32 s{S_S}, s{S_S}, s{S_W}
    s_sub_u32 s{S_S}, s{S_S}, 6
    s_add_u32 s{S_T0}, s2, 512
    s_cmp_eq_u32 s{S_W}, 8
    s_cselect_b32 s{S_S}, s{S_T0}, s{S_S}
    ; rows: r0 = s, r1 = 2048-s, r2 = 1024-s, r3 = 1024+s
    s_mul_i32 s{S_R0}, s{S_S}, 1152
    s_sub_u32 s{S_R0+1}, {2048*1152}, s{S_R0}
    s_sub_u32 s{S_R0+2}, {1024*1152}, s{S_R0}
    s_add_u32 s{S_R0+3}, {1024*1152}, s{S_R0}
    s_cmp_eq_u32 s{S_S}, 0
    s_cselect_b32 s{S_R0+1}, {HUGE:#x}, s{S_R0+1}
    s_cselect_b32 s{S_R0+2}, {HUGE:#x}, s{S_R0+2}
    s_cmp_ge_u32 s{S_S}, 512
    s_cselect_b32 s{S_R0+2}, {HUGE:#x}, s{S_R0+2}
    s_cselect_b32 s{S_R0+3}, {HUGE:#x}, s{S_R0+3}
    s_cmp_ge_u32 s{S_S}, 513
    s_cselect_b32 s{S_R0}, {HUGE:#x}, s{S_R0}
    s_cselect_b32 s{S_R0+1}, {HUGE:#x}, s{S_R0+1}
    """)
    VF, VM, VX = 8, 9, 10
    F, M, X = 16, 32, 48
    e(f"""
    v_mov_b32 v{V_T3}, {HUGE:#x}
    v_lshlrev_b32 v{VF}, 4, v{V_LANE}
    v_sub_u32 v{VM}, {71*16}, v{VF}
    v_sub_u32 v{VX}, {72*16}, v{VF}
    v_cmp_lt_u32 vcc, 36, v{V_LANE}
    v_cndmask_b32 v{VF}, v{VF}, v{V_T3}, vcc
    v_cmp_lt_u32 vcc, 35, v{V_LANE}
    v_cndmask_b32 v{VM}, v{VM}, v{V_T3}, vcc
    v_cndmask_b32 v{VX}, v{VX}, v{V_T3}, vcc
    v_cmp_eq_u32 vcc, 0, v{V_LANE}
    v_cndmask_b32 v{VX}, v{VX}, v{V_T3}, vcc
    """)
    for r in range(4):
        e(f"""
        buffer_load_dwordx4 {vr(F+4*r,4)}, v{VF}, {sr(SBX,4)}, s{S_R0+r} offen
        buffer_load_dwordx4 {vr(M+4*r,4)}, v{VM}, {sr(SBX,4)}, s{S_R0+r} offen
        buffer_load_ushort v{X+r}, v{VX}, {sr(SBX,4)}, s{S_R0+r} offen
        """)
    gjob_dma(e)
    ops = []
    FE, FO = 56, 88
    TA, TB = 52, 53
    O = 120
    for r in range(4):
        for j in range(8):
            src = F + 4 * r + (j >> 1)
            ops.append(f"v_and_b32 v{TA}, 0xffff0000, v{src}" if (j & 1) else f"v_lshlrev_b32 v{TA}, 16, v{src}")
            if j == 0:
                ops.append(f"v_lshlrev_b32 v{TB}, 16, v{X+r}")
            else:
                el = 8 - j
                src = M + 4 * r + (el >> 1)
                ops.append(f"v_and_b32 v{TB}, 0xffff0000, v{src}" if (el & 1) else f"v_lshlrev_b32 v{TB}, 16, v{src}")
            ops.append(f"v_add_f32 v{FE+8*r+j}, v{TA}, v{TB}")
            ops.append(f"v_sub_f32 v{FO+8*r+j}, v{TA}, v{TB}")
    for j in range(8):
        ops.append(f"v_add_f32 v{TA}, v{FE+j}, v{FE+8+j}")
        ops.append(f"v_add_f32 v{TB}, v{FE+16+j}, v{FE+24+j}")
        ops.append(f"v_add_f32 v{O+j}, v{TA}, v{TB}")
        ops.append(f"v_sub_f32 v{O+8+j}, v{TA}, v{TB}")
        ops.append(f"v_sub_f32 v{TA}, v{FO+j}, v{FO+8+j}")
        ops.append(f"v_sub_f32 v{TB}, v{FO+24+j}, v{FO+16+j}")
        ops.append(f"v_add_f32 v{O+16+j}, v{TA}, v{TB}")
        ops.append(f"v_sub_f32 v{O+24+j}, v{TA}, v{TB}")
    PK = 16
    MK0, MK1 = 11, 12
    ops.append(f"v_cmp_eq_u32 vcc, 36, v{V_LANE}")
    ops.append(f"v_mov_b32 v{TA}, 0xffff")
    ops.append(f"v_mov_b32 v{TB}, 0")
    ops.append(f"v_cndmask_b32 v{MK0}, -1, v{TA}, vcc")
    ops.append(f"v_cndmask_b32 v{MK1}, -1, v{TB}, vcc")
    for g in range(4):
        for d in range(4):
            ops.append(f"v_cvt_pk_bf16_f32 v{PK+4*g+d}, v{O+8*g+2*d}, v{O+8*g+2*d+1}")
    for g in range(4):
        for d in range(4):
            ops.append(f"v_and_b32 v{PK+4*g+d}, v{PK+4*g+d}, v{MK0 if d == 0 else MK1}")
    n = len(ops); per = (n + 8) // 9
    for i in range(9):
        e(f"s_waitcnt vmcnt({2*(8-i)})\ns_barrier")
        for op in ops[i*per:(i+1)*per]:
            e(op)
    e(f"""
    s_cmp_ge_u32 s{S_S}, 544
    s_cbranch_scc1 K1_end
    s_lshr_b32 s{S_T0}, s{S_S}, 5
    s_mul_i32 s{S_T0}, s{S_T0}, {19*1024}
    s_and_b32 s{S_T1}, s{S_S}, 31
    s_lshl_b32 s{S_T1}, s{S_T1}, 4
    s_add_u32 s{S_T0}, s{S_T0}, s{S_T1}
    s_add_u32 s{S_T0}, s{S_T0}, {WS_XF}
    v_lshlrev_b32 v{V_T0}, 9, v{V_LANE}
    s_mov_b32 exec_hi, 0x3f
    """)
    for g in range(4):
        e(f"buffer_store_dwordx4 {vr(PK+4*g,4)}, v{V_T0}, {sr(SWS,4)}, s{S_T0} offen")
        if g < 3:
            e(f"s_add_u32 s{S_T0}, s{S_T0}, {17*19*1024}")
    e.lab("K1_end")
    e("s_endpgm")

SCM = 56
S_HW, S_P, S_I, S_J, S_MAT, S_B0, S_B1, S_B2 = 60, 61, 62, 63, 64, 65, 66, 67

def b_decode(e):
    e(f"""
    s_and_b32 s{S_J}, s2, 15
    s_lshr_b32 s{S_B0}, s2, 4
    s_and_b32 s{S_P}, s{S_B0}, 1
    s_lshr_b32 s{S_I}, s{S_B0}, 1
    s_lshr_b32 s{S_MAT}, s{S_HW}, 1
    """)

BB_ACC, BB_A, BB_B, BB_VA, BB_VB = 16, 32, 64, 8, 9
def bbig_kloop(e, nks=33, D=8):
    def loads(ks):
        sl = ks % D
        e(f"buffer_load_dwordx4 {vr(BB_A+4*sl,4)}, v{BB_VA}, {sr(SCM,4)}, 0 offen offset:{ks*32}")
        e(f"s_add_u32 s{S_B2}, s{S_B1}, {ks*608}")
        e(f"buffer_load_dwordx4 {vr(BB_B+4*sl,4)}, v{BB_VB}, {sr(SWS,4)}, s{S_B2} offen sc1")
    for ks in range(D):
        loads(ks)
    for ks in range(nks):
        rem = min(D - 1, nks - 1 - ks)
        e(f"s_waitcnt vmcnt({2*rem})")
        sl = ks % D
        c = "0" if ks == 0 else vr(BB_ACC, 16)
        e(f"v_mfma_f32_32x32x16_bf16 {vr(BB_ACC,16)}, {vr(BB_A+4*sl,4)}, {vr(BB_B+4*sl,4)}, {c}")
        if ks + D < nks:
            loads(ks + D)
    e("s_nop 7\ns_nop 7")

def bbig(e, pfx, XCH, XFL):
    L = V_LANE
    COL, H, T0, T1, T2, T3 = 10, 11, 4, 5, 6, 7
    AE, AM = 12, 13
    e(f"""
    v_and_b32 v{COL}, 31, v{L}
    v_lshrrev_b32 v{H}, 5, v{L}
    s_lshl_b32 s{S_B0}, s{S_I}, 6
    s_and_b32 s{S_B1}, s{S_HW}, 1
    s_lshl_b32 s{S_B1}, s{S_B1}, 5
    s_add_u32 s{S_B0}, s{S_B0}, s{S_B1}
    s_lshl_b32 s{S_B0}, s{S_B0}, 1
    s_add_u32 s{S_B0}, s{S_B0}, s{S_P}
    v_lshlrev_b32 v{T0}, 1, v{COL}
    v_add_u32 v{T0}, s{S_B0}, v{T0}
    v_lshlrev_b32 v{T0}, 12, v{T0}
    v_lshlrev_b32 v{T1}, 4, v{H}
    v_add_u32 v{BB_VA}, v{T0}, v{T1}
    ; B address
    v_min_u32 v{T0}, 18, v{COL}
    v_lshlrev_b32 v{T0}, 4, v{T0}
    v_mul_u32_u24 v{T1}, 304, v{H}
    v_add_u32 v{BB_VB}, v{T0}, v{T1}
    s_lshl_b32 s{S_B1}, s{S_MAT}, 1
    s_add_u32 s{S_B1}, s{S_B1}, s{S_P}
    s_lshl_b32 s{S_B1}, s{S_B1}, 4
    s_add_u32 s{S_B1}, s{S_B1}, s{S_J}
    s_mul_i32 s{S_B1}, s{S_B1}, {34*608}
    s_add_u32 s{S_B1}, s{S_B1}, {WS_AB}
    """)
    bbig_kloop(e)
    A = BB_ACC
    RX = 32
    e(f"""
    v_lshlrev_b32 v{T0}, 4, v{L}
    s_lshl_b32 s{S_B2}, s{S_HW}, 11
    s_add_u32 s{S_B2}, s{S_B2}, {XCH}
    v_add_u32 v{T1}, s{S_B2}, v{T0}
    s_xor_b32 s{S_B2}, s{S_HW}, 2
    s_lshl_b32 s{S_B2}, s{S_B2}, 11
    s_add_u32 s{S_B2}, s{S_B2}, {XCH}
    v_add_u32 v{T2}, s{S_B2}, v{T0}
    s_cmp_eq_u32 s{S_MAT}, 0
    s_cbranch_scc1 {pfx}_xu
    ds_write_b128 v{T1}, {vr(A,4)}
    ds_write_b128 v{T1}, {vr(A+4,4)} offset:1024
    s_branch {pfx}_xd
    """)
    e.lab(f"{pfx}_xu")
    e(f"""
    ds_write_b128 v{T1}, {vr(A+8,4)}
    ds_write_b128 v{T1}, {vr(A+12,4)} offset:1024
    """)
    e.lab(f"{pfx}_xd")
    e(f"""
    s_lshl_b32 s{S_B2}, s{S_HW}, 2
    s_add_u32 s{S_B2}, s{S_B2}, {XFL}
    v_mov_b32 v{T0}, s{S_B2}
    v_mov_b32 v{T3}, 1
    s_xor_b32 s{S_B2}, s{S_B2}, 8
    v_mov_b32 v{T1}, s{S_B2}
    s_waitcnt lgkmcnt(0)
    ds_write_b32 v{T0}, v{T3}
    """)
    e.lab(f"{pfx}_poll")
    e(f"""
    ds_read_b32 v{T3}, v{T1}
    s_waitcnt lgkmcnt(0)
    v_readfirstlane_b32 s{S_B2}, v{T3}
    s_cmp_eq_u32 s{S_B2}, 1
    s_cbranch_scc1 {pfx}_got
    s_sleep 1
    s_branch {pfx}_poll
    """)
    e.lab(f"{pfx}_got")
    e(f"""
    ds_read_b128 {vr(RX,4)}, v{T2}
    ds_read_b128 {vr(RX+4,4)}, v{T2} offset:1024
    s_mul_i32 s{S_B2}, s{S_J}, 18
    v_add_u32 v{T0}, s{S_B2}, v{COL}             ; e
    v_lshlrev_b32 v{AE}, 1, v{T0}
    v_sub_u32 v{AM}, {1152 + 1152}, v{AE}        ; (576 + 576 - e)*2
    v_add_u32 v{AE}, 1152, v{AE}
    v_mov_b32 v{T3}, {HUGE:#x}
    s_cmp_eq_u32 s{S_J}, 15
    s_cselect_b32 s{S_B2}, 18, 17
    v_cmp_lt_u32 vcc, s{S_B2}, v{COL}
    v_cndmask_b32 v{AE}, v{AE}, v{T3}, vcc
    v_cmp_lt_u32 vcc, 17, v{COL}
    v_cndmask_b32 v{AM}, v{AM}, v{T3}, vcc
    v_cmp_eq_u32 vcc, 0, v{T0}
    v_cndmask_b32 v{AM}, v{AM}, v{T3}, vcc
    s_lshl_b32 s{S_B2}, s{S_MAT}, 5
    s_add_u32 s{S_B2}, s{S_B2}, s{S_B0}
    v_lshlrev_b32 v{T0}, 3, v{H}
    v_add_u32 v{T0}, s{S_B2}, v{T0}
    v_mul_u32_u24 v{T0}, 2304, v{T0}             ; t*2304
    v_sub_u32 v{T1}, {2048*2304}, v{T0}          ; (N-t)*2304
    v_add_u32 v40, v{T0}, v{AE}
    v_add_u32 v41, v{T0}, v{AM}
    v_add_u32 v42, v{T1}, v{AE}
    v_add_u32 v43, v{T1}, v{AM}
    s_waitcnt lgkmcnt(0)
    s_cmp_eq_u32 s{S_MAT}, 0
    s_cbranch_scc1 {pfx}_cu
    """)
    DF, SM = 48, 56
    for i in range(8):
        e(f"v_sub_f32 v{DF+i}, v{RX+i}, v{A+8+i}\nv_add_f32 v{SM+i}, v{RX+i}, v{A+8+i}")
    e(f"s_branch {pfx}_cd")
    e.lab(f"{pfx}_cu")
    for i in range(8):
        e(f"v_sub_f32 v{DF+i}, v{A+i}, v{RX+i}\nv_add_f32 v{SM+i}, v{A+i}, v{RX+i}")
    e.lab(f"{pfx}_cd")
    PK = 64
    for i in range(8):
        e(f"v_cvt_pk_bf16_f32 v{PK+i}, v{DF+i}, v{SM+i}")
    for i in range(8):
        ro = (8 * (i >> 2) + (i & 3)) * 2 * 2304
        e(f"""
        s_mov_b32 s{S_B2}, {ro}
        buffer_store_short v{PK+i}, v40, {sr(SOUT,4)}, s{S_B2} offen
        buffer_store_short_d16_hi v{PK+i}, v41, {sr(SOUT,4)}, s{S_B2} offen
        v_subrev_u32 v44, s{S_B2}, v42
        v_subrev_u32 v45, s{S_B2}, v43
        buffer_store_short_d16_hi v{PK+i}, v44, {sr(SOUT,4)}, 0 offen
        buffer_store_short v{PK+i}, v45, {sr(SOUT,4)}, 0 offen
        """)
    e(f"""
    s_cmp_eq_u32 s{S_P}, 0
    s_cbranch_scc0 {pfx}_done
    s_cmp_eq_u32 s{S_I}, 7
    s_cbranch_scc0 {pfx}_done
    s_cmp_eq_u32 s{S_HW}, 1
    s_cbranch_scc0 {pfx}_done
    v_add_u32 v{BB_VA}, {64*4096}, v{BB_VA}
    s_waitcnt vmcnt(0)
    """)
    bbig_kloop(e)
    e(f"""
    v_cvt_pk_bf16_f32 v{PK}, v{A}, v{A}
    s_mov_b32 s{S_B2}, {1024*2304}
    s_mov_b32 exec_hi, 0
    buffer_store_short v{PK}, v{AE}, {sr(SOUT,4)}, s{S_B2} offen
    buffer_store_short v{PK}, v{AM}, {sr(SOUT,4)}, s{S_B2} offen
    s_mov_b32 exec_hi, -1
    """)
    e.lab(f"{pfx}_done")

def gen_k3(e):
    kernel_head(e, "k3_kernel")
    e(f"""
    s_cmp_ge_u32 s2, 256
    s_cbranch_scc1 K3_end
    s_load_dwordx2 s[6:7], s[0:1], 32
    s_load_dwordx4 s[8:11], s[0:1], 48
    s_load_dwordx2 s[12:13], s[0:1], 80
    s_load_dwordx2 s[14:15], s[0:1], 96
    """)
    gjob_decode(e)
    e("s_waitcnt lgkmcnt(0)")
    srd(e, SX, 14, WS_END)
    srd(e, SW, 6, 663552)
    srd(e, SWS, 14, WS_END)
    srd(e, SOUT, 12, 2048 * 2304)
    S_XO = 51
    e(f"s_mov_b32 s{S_XO}, {WS_O}")
    gjob_dma(e, S_XO)
    e(f"""
    s_cmp_ge_u32 s{S_W}, 6
    s_cbranch_scc1 K3_aux
    """)
    gjob_compute_setup(e, False)
    gjob_mainloop(e, False, "K3")
    A, P = V_ACC, V_P
    pack16(e, A, P)
    e(f"""
    s_lshl_b32 s{S_T0}, s{S_RB}, 6
    v_add_u32 v{V_T0}, s{S_T0}, v{V_ROW}
    v_mul_u32_u24 v{V_T0}, 2304, v{V_T0}
    v_lshlrev_b32 v{V_T1}, 4, v{V_H}
    v_add_u32 v{V_T0}, v{V_T0}, v{V_T1}
    s_mul_i32 s{S_T0}, s{S_C}, 144
    s_lshl_b32 s{S_T1}, s{S_NB}, 6
    s_add_u32 s{S_T0}, s{S_T0}, s{S_T1}
    v_permlane32_swap_b32 v{P}, v{P+2}
    v_permlane32_swap_b32 v{P+1}, v{P+3}
    v_permlane32_swap_b32 v{P+4}, v{P+6}
    v_permlane32_swap_b32 v{P+5}, v{P+7}
    s_cmp_eq_u32 s{S_NB}, 2
    s_cbranch_scc1 K3_nb2
    buffer_store_dwordx4 {vr(P,4)}, v{V_T0}, {sr(SOUT,4)}, s{S_T0} offen
    buffer_store_dwordx4 {vr(P+4,4)}, v{V_T0}, {sr(SOUT,4)}, s{S_T0} offen offset:32
    s_branch K3_bb
    """)
    e.lab("K3_nb2")
    e(f"""
    s_mov_b32 exec_hi, 0
    buffer_store_dwordx4 {vr(P,4)}, v{V_T0}, {sr(SOUT,4)}, s{S_T0} offen
    s_mov_b32 exec_hi, -1
    """)
    e.lab("K3_bb")
    e(f"""
    s_barrier
    s_cmp_ge_u32 s{S_W}, 4
    s_cbranch_scc1 K3_end
    v_mov_b32 v{V_T0}, {WKOFF}
    v_lshlrev_b32 v{V_T1}, 2, v{V_LANE}
    v_add_u32 v{V_T0}, v{V_T0}, v{V_T1}
    v_mov_b32 v{V_T1}, 0
    ds_write_b32 v{V_T0}, v{V_T1}
    s_waitcnt lgkmcnt(0)
    s_barrier
    s_mov_b32 s{S_HW}, s{S_W}
    """)
    b_decode(e)
    e(f"""
    s_cmp_eq_u32 s{S_MAT}, 0
    s_cselect_b32 s{SCM}, s8, s10
    s_cselect_b32 s{SCM+1}, s9, s11
    s_mov_b32 s{SCM+2}, {2048*4096}
    s_mov_b32 s{SCM+3}, 0x00020000
    s_waitcnt vmcnt(0)
    """)
    bbig(e, "K3B", 0, WKOFF)
    e("s_branch K3_end")
    e.lab("K3_aux")
    for i in range(9):
        e(f"s_waitcnt vmcnt({2*(8-i)})\ns_barrier")
    e.lab("K3_end")
    e("s_endpgm")

def gen_k2(e):
    kernel_head(e, "k2_kernel")
    L = V_LANE
    e(f"""
    s_cmp_ge_u32 s2, 256
    s_cbranch_scc1 K2_end
    s_load_dwordx4 s[8:11], s[0:1], 64
    s_load_dwordx2 s[14:15], s[0:1], 96
    v_and_b32 v{L}, 63, v0
    v_lshrrev_b32 v2, 6, v0
    s_nop 0
    v_readfirstlane_b32 s{S_W}, v2
    s_waitcnt lgkmcnt(0)
    """)
    srd(e, SWS, 14, WS_END)
    e(f"""
    s_cmp_ge_u32 s{S_W}, 8
    s_cbranch_scc1 K2_helper
    """)
    S0, S1, O, P = 16, 32, 48, 64
    Q1, Q2, KA, KB, VA, VB = 72, 76, 80, 84, 88, 92
    AKA, AKB, AV = 8, 9, 10
    T0, T1, T2, T3, H, COL = 2, 3, 4, 5, 6, 7
    S_ROW, S_IT, S_FB, S_N = 51, 52, 53, 54
    e(f"""
    v_and_b32 v{COL}, 31, v{L}
    v_lshrrev_b32 v{H}, 5, v{L}
    s_lshl_b32 s{S_ROW}, s2, 3
    s_add_u32 s{S_ROW}, s{S_ROW}, s{S_W}
    s_mul_i32 s{S_ROW}, s{S_ROW}, 1152
    v_mul_u32_u24 v{T0}, 36, v{COL}
    v_lshlrev_b32 v{T1}, 4, v{H}
    v_add_u32 v{T1}, v{T0}, v{T1}
    buffer_load_dwordx4 {vr(Q1,4)}, v{T1}, {sr(SWS,4)}, s{S_ROW} offen offset:{WS_Q}
    buffer_load_dword v{Q2}, v{T0}, {sr(SWS,4)}, s{S_ROW} offen offset:{WS_Q+32}
    ; K/V fill
    v_lshlrev_b32 v{T2}, 4, v{L}
    s_lshl_b32 s{S_T0}, s{S_W}, 10
    s_add_u32 s{S_T1}, s{S_T0}, {WS_KV}
    """)
    for i in range(19):
        e(f"s_add_u32 m0, s{S_T0}, {i*8192}")
        if i:
            e(f"s_add_u32 s{S_T1}, s{S_T1}, 8192")
        else:
            e("s_nop 0")
        e(f"buffer_load_dwordx4 v{T2}, {sr(SWS,4)}, s{S_T1} offen lds")
    e(f"""
    v_lshlrev_b32 v{AKA}, 4, v{L}
    v_lshlrev_b32 v{AKB}, 2, v{COL}
    v_add_u32 v{AKB}, 1024, v{AKB}
    v_subrev_u32 v{T0}, 16, v{COL}
    v_cmp_lt_u32 vcc, 18, v{COL}
    v_cndmask_b32 v{T0}, v{COL}, v{T0}, vcc
    v_cmp_eq_u32 vcc, 4, v{COL}
    v_cndmask_b32 v{T0}, v{T0}, 18, vcc
    v_cmp_eq_u32 vcc, 18, v{COL}
    v_cndmask_b32 v{T0}, v{T0}, 4, vcc
    v_cmp_eq_u32 vcc, 22, v{COL}
    v_cndmask_b32 v{T0}, v{T0}, 4, vcc
    v_lshlrev_b32 v{T0}, 4, v{T0}
    v_mul_u32_u24 v{T1}, 304, v{H}
    v_add_u32 v{AV}, v{T0}, v{T1}
    v_add_u32 v{AV}, 1152, v{AV}
    v_mov_b32 v{KB+1}, 0x3f803f80
    v_mov_b32 v{Q2+1}, 0
    s_mov_b32 s{S_FB}, 0
    s_mov_b32 s{S_N}, 1
    s_waitcnt vmcnt(15)
    v_cmp_gt_u32 vcc, 32, v{L}
    v_cndmask_b32 v{Q2}, 0, v{Q2}, vcc
    s_barrier
    """)
    e.lab("K2_pass1")
    MX = 11
    e(f"""
    v_mov_b32 v{MX}, 0xff800000
    v_mov_b32 v{Q2+1}, 0
    v_mov_b32 v{T0}, v{AKA}
    v_mov_b32 v{T1}, v{AKB}
    s_mov_b32 s{S_IT}, s{S_N}
    """)
    e.lab("K2_p1loop")
    e(f"""
    ds_read_b128 {vr(KA,4)}, v{T0}
    ds_read_b32 v{KB}, v{T1}
    v_add_u32 v{T0}, {KVT}, v{T0}
    v_add_u32 v{T1}, {KVT}, v{T1}
    s_waitcnt lgkmcnt(0)
    v_mfma_f32_32x32x16_bf16 {vr(S0,16)}, {vr(KA,4)}, {vr(Q1,4)}, 0
    v_mfma_f32_32x32x8_bf16 {vr(S0,16)}, {vr(KB,2)}, {vr(Q2,2)}, {vr(S0,16)}
    s_nop 7
    s_nop 7
    """)
    for i in range(8):
        e(f"v_max3_f32 v{MX}, v{MX}, v{S0+2*i}, v{S0+2*i+1}")
    e(f"""
    s_sub_u32 s{S_IT}, s{S_IT}, 1
    s_cmp_lg_u32 s{S_IT}, 0
    s_cbranch_scc1 K2_p1loop
    v_mov_b32 v{T0}, v{MX}
    s_nop 1
    v_permlane32_swap_b32 v{MX}, v{T0}
    s_nop 1
    v_max_f32 v{MX}, v{MX}, v{T0}
    s_cmp_eq_u32 s{S_FB}, 0
    s_cselect_b32 s{S_T0}, 0x42000000, 0
    v_add_f32 v{MX}, s{S_T0}, v{MX}
    v_sub_f32 v{T0}, 0, v{MX}                    ; t = -m
    v_and_b32 v{T1}, 0xffff0000, v{T0}           ; hi
    v_sub_f32 v{T0}, v{T0}, v{T1}
    v_and_b32 v{T2}, 0xffff0000, v{T0}           ; mid
    v_sub_f32 v{T0}, v{T0}, v{T2}
    v_lshrrev_b32 v{T1}, 16, v{T1}
    v_or_b32 v{T1}, v{T1}, v{T2}
    v_lshrrev_b32 v{T0}, 16, v{T0}
    v_cmp_gt_u32 vcc, 32, v{L}
    v_cndmask_b32 v{Q2+1}, v{T0}, v{T1}, vcc
    """)
    LA, LB, LV = 12, 13, 14
    e(f"""
    v_mov_b32 v{LA}, v{AKA}
    v_mov_b32 v{LB}, v{AKB}
    v_mov_b32 v{LV}, v{AV}
    ds_read_b128 {vr(KA,4)}, v{LA}
    ds_read_b32 v{KB}, v{LB}
    """)
    for i in range(16):
        e(f"v_mov_b32 v{O+i}, 0")
    e(f"""
    s_waitcnt lgkmcnt(0)
    v_mfma_f32_32x32x16_bf16 {vr(S0,16)}, {vr(KA,4)}, {vr(Q1,4)}, 0
    v_mfma_f32_32x32x8_bf16 {vr(S0,16)}, {vr(KB,2)}, {vr(Q2,2)}, {vr(S0,16)}
    s_nop 3
    ds_read_b128 {vr(KA,4)}, v{LA} offset:{KVT}
    ds_read_b32 v{KB}, v{LB} offset:{KVT}
    ds_read_b128 {vr(VA,4)}, v{LV}
    ds_read_b128 {vr(VB,4)}, v{LV} offset:608
    s_mov_b32 s{S_IT}, 0
    s_nop 7
    """)
    e.lab("K2_loop")
    for t in range(8):
        SC, SN = (S0, S1) if t % 2 == 0 else (S1, S0)
        ex = lambda i: e(f"v_exp_f32 v{SC+i}, v{SC+i}")
        cv = lambda j: e(f"v_cvt_pk_bf16_f32 v{P+j}, v{SC+2*j}, v{SC+2*j+1}")
        e("s_waitcnt lgkmcnt(2)")
        e(f"v_mfma_f32_32x32x16_bf16 {vr(SN,16)}, {vr(KA,4)}, {vr(Q1,4)}, 0")
        for i in range(4): ex(i)
        e(f"v_mfma_f32_32x32x8_bf16 {vr(SN,16)}, {vr(KB,2)}, {vr(Q2,2)}, {vr(SN,16)}")
        ex(4); ex(5)
        e(f"ds_read_b128 {vr(KA,4)}, v{LA} offset:{(t+2)*KVT}")
        e(f"ds_read_b32 v{KB}, v{LB} offset:{(t+2)*KVT}")
        ex(6); ex(7)
        for j in range(4): cv(j)
        ex(8); ex(9)
        e("s_waitcnt lgkmcnt(3)")
        e(f"v_mfma_f32_32x32x16_bf16 {vr(O,16)}, {vr(VA,4)}, {vr(P,4)}, {vr(O,16)}")
        ex(10); ex(11)
        e(f"ds_read_b128 {vr(VA,4)}, v{LV} offset:{(t+1)*KVT}")
        for i in range(12, 16): ex(i)
        for j in range(4, 8): cv(j)
        e("s_waitcnt lgkmcnt(3)")
        e("s_nop 0")
        e(f"v_mfma_f32_32x32x16_bf16 {vr(O,16)}, {vr(VB,4)}, {vr(P+4,4)}, {vr(O,16)}")
        e("s_nop 1")
        e(f"ds_read_b128 {vr(VB,4)}, v{LV} offset:{(t+1)*KVT+608}")
    e(f"""
    v_add_u32 v{LA}, {8*KVT}, v{LA}
    v_add_u32 v{LB}, {8*KVT}, v{LB}
    v_add_u32 v{LV}, {8*KVT}, v{LV}
    s_add_u32 s{S_IT}, s{S_IT}, 1
    s_or_b32 s{S_T0}, s{S_FB}, s{S_IT}
    s_cmp_lg_u32 s{S_T0}, 1
    s_cbranch_scc1 K2_nobar
    s_waitcnt vmcnt(0)
    s_barrier
    """)
    e.lab("K2_nobar")
    e(f"""
    s_cmp_lt_u32 s{S_IT}, 8
    s_cbranch_scc1 K2_loop
    s_waitcnt lgkmcnt(0)
    s_nop 7
    s_nop 7
    s_cmp_lg_u32 s{S_FB}, 0
    s_cbranch_scc1 K2_fin
    v_mov_b32 v{T0}, 0x7b800000
    v_cmp_nlt_f32 vcc, v{O+10}, v{T0}
    s_mov_b64 s[56:57], vcc
    v_mov_b32 v{T1}, 0x207
    """)
    for i in list(range(8)) + [8, 9]:
        e(f"v_cmp_class_f32 vcc, v{O+i}, v{T1}")
        if i >= 8:
            e("s_mov_b32 vcc_hi, 0")
        e("s_or_b64 s[56:57], s[56:57], vcc")
    e(f"""
    s_cmp_eq_u64 s[56:57], 0
    s_cbranch_scc1 K2_fin
    s_mov_b32 s{S_FB}, 2
    s_mov_b32 s{S_N}, 64
    s_branch K2_pass1
    """)
    e.lab("K2_fin")
    e(f"v_rcp_f32 v{T0}, v{O+10}\ns_nop 1")
    for i in range(10):
        e(f"v_mul_f32 v{O+i}, v{O+i}, v{T0}")
    for j in range(5):
        e(f"v_cvt_pk_bf16_f32 v{P+j}, v{O+2*j}, v{O+2*j+1}")
    e(f"""
    v_mul_u32_u24 v{T0}, 36, v{COL}
    v_lshlrev_b32 v{T1}, 3, v{H}
    v_add_u32 v{T1}, v{T0}, v{T1}
    s_add_u32 s{S_ROW}, s{S_ROW}, {WS_O}
    buffer_store_dwordx2 {vr(P,2)}, v{T1}, {sr(SWS,4)}, s{S_ROW} offen
    buffer_store_dwordx2 {vr(P+2,2)}, v{T1}, {sr(SWS,4)}, s{S_ROW} offen offset:16
    s_mov_b32 exec_hi, 0
    buffer_store_dword v{P+4}, v{T0}, {sr(SWS,4)}, s{S_ROW} offen offset:32
    s_branch K2_end
    """)
    e.lab("K2_helper")
    e(f"s_sub_u32 s{S_HW}, s{S_W}, 8")
    b_decode(e)
    SD = SCM
    S_SB = 68
    ACC, FA, FB, VAa, VBb = 16, 32, 32 + 76 - 12, 8, 9
    D = 10
    FA, FB = 32, 32 + 4 * D
    e(f"""
    s_cmp_eq_u32 s{S_MAT}, 0
    s_cselect_b32 s{SD}, s8, s10
    s_cselect_b32 s{SD+1}, s9, s11
    s_mov_b32 s{SD+2}, 663552
    s_mov_b32 s{SD+3}, 0x00020000
    v_and_b32 v{COL}, 31, v{L}
    v_lshrrev_b32 v{H}, 5, v{L}
    v_lshlrev_b32 v{VAa}, 4, v{L}
    v_min_u32 v{T0}, 18, v{COL}
    s_mul_i32 s{S_B0}, s{S_J}, 18
    v_add_u32 v{T1}, s{S_B0}, v{T0}
    v_mul_u32_u24 v{T1}, 1152, v{T1}
    v_lshlrev_b32 v{T2}, 4, v{H}
    v_add_u32 v{VBb}, v{T1}, v{T2}
    v_lshlrev_b32 v{T0}, 4, v{COL}
    v_mul_u32_u24 v{T1}, 304, v{H}
    v_add_u32 v10, v{T0}, v{T1}
    v_mov_b32 v{T3}, {HUGE:#x}
    v_cmp_lt_u32 vcc, 18, v{COL}
    v_cndmask_b32 v10, v10, v{T3}, vcc
    s_lshl_b32 s{S_SB}, s{S_I}, 1
    s_and_b32 s{S_B0}, s{S_HW}, 1
    s_add_u32 s{S_SB}, s{S_SB}, s{S_B0}
    s_barrier
    s_barrier
    """)
    e.lab("K2_bs")
    e(f"""
    s_lshl_b32 s{S_B0}, s{S_MAT}, 1
    s_add_u32 s{S_B0}, s{S_B0}, s{S_P}           ; G
    s_mul_i32 s{S_B1}, s{S_B0}, 17
    s_add_u32 s{S_B1}, s{S_B1}, s{S_SB}
    s_mul_i32 s{S_B1}, s{S_B1}, {19*1024}
    s_add_u32 s{S_B1}, s{S_B1}, {WS_XF}
    """)
    def loads(ks):
        sl = ks % D
        e(f"s_add_u32 s{S_B2}, s{S_B1}, {ks*1024}")
        e(f"buffer_load_dwordx4 {vr(FA+4*sl,4)}, v{VAa}, {sr(SWS,4)}, s{S_B2} offen")
        e(f"buffer_load_dwordx4 {vr(FB+4*sl,4)}, v{VBb}, {sr(SD,4)}, 0 offen offset:{ks*32}")
    for ks in range(D): loads(ks)
    for ks in range(19):
        rem = min(D - 1, 18 - ks)
        e(f"s_waitcnt vmcnt({2*rem})")
        sl = ks % D
        c = "0" if ks == 0 else vr(ACC, 16)
        e(f"v_mfma_f32_32x32x16_bf16 {vr(ACC,16)}, {vr(FA+4*sl,4)}, {vr(FB+4*sl,4)}, {c}")
        if ks + D < 19: loads(ks + D)
    e("s_nop 7\ns_nop 7")
    PK = 112
    pack16(e, ACC, PK)
    e(f"""
    s_lshl_b32 s{S_B0}, s{S_B0}, 4
    s_add_u32 s{S_B0}, s{S_B0}, s{S_J}
    s_mul_i32 s{S_B0}, s{S_B0}, 34
    s_lshl_b32 s{S_B2}, s{S_SB}, 1
    s_add_u32 s{S_B0}, s{S_B0}, s{S_B2}
    s_mul_i32 s{S_B0}, s{S_B0}, 608
    s_add_u32 s{S_B0}, s{S_B0}, {WS_AB}
    v_permlane32_swap_b32 v{PK}, v{PK+2}
    v_permlane32_swap_b32 v{PK+1}, v{PK+3}
    v_permlane32_swap_b32 v{PK+4}, v{PK+6}
    v_permlane32_swap_b32 v{PK+5}, v{PK+7}
    buffer_store_dwordx4 {vr(PK,4)}, v10, {sr(SWS,4)}, s{S_B0} offen sc1
    buffer_store_dwordx4 {vr(PK+4,4)}, v10, {sr(SWS,4)}, s{S_B0} offen offset:608 sc1
    s_cmp_eq_u32 s{S_SB}, 15
    s_cbranch_scc0 K2_end
    s_mov_b32 s{S_SB}, 16
    s_waitcnt vmcnt(0)
    s_branch K2_bs
    """)
    e.lab("K2_end")
    e("s_endpgm")

def main():
    hdr = open("concat_heads__grouped_kv_mqa__spectral_fnet__prompt.s.ref").read().split("\n")
    hdr = [l for l in hdr if l.startswith(";") and "@launch" not in l and "Override launch" not in l and "grid=ceil" not in l]
    e = E()
    for l in hdr: e.raw(l)
    e.raw("; @launch kernel=k1_kernel grid=(256,1,1) block=(576,1,1) lds=163840")
    e.raw("; @launch kernel=k2_kernel grid=(256,1,1) block=(768,1,1) lds=163840")
    e.raw("; @launch kernel=k3_kernel grid=(256,1,1) block=(576,1,1) lds=163840")
    e.raw('.amdgcn_target "amdgcn-amd-amdhsa--gfx950"\n.text')
    gen_k1(e); gen_k2(e); gen_k3(e)
    e.raw('.section .rodata,"a"')
    e.raw(kernel_desc("k1_kernel", 168)); e.raw(kernel_desc("k2_kernel", 128)); e.raw(kernel_desc("k3_kernel", 128))
    out = sys.argv[1] if len(sys.argv) > 1 and not sys.argv[1].startswith("-") else "concat_heads__grouped_kv_mqa__spectral_fnet__prompt.s"
    lines = e.text().split("\n")
    import hazard
    n = hazard.pad(lines, verbose="-v" in sys.argv)
    print("inserted pads:", n)
    open(out, "w").write("\n".join(lines))

main()
```

```python
import sys, math, struct

WS_Q, WS_KV, WS_O, WS_XF, WS_AB, WS_END = 0, 0x240000, 0x280000, 0x4C0000, 0x610000, 0x800000
KVT = 2368
HUGE = 0x40000000

def f32bits(x): return struct.unpack("<I", struct.pack("<f", x))[0]
QSCALE = f32bits(1.4426950408889634 / math.sqrt(18.0))

class E:
    def __init__(s): s.l = []
    def __call__(s, x):
        for ln in x.strip("\n").split("\n"):
            s.l.append("    " + ln.strip())
    def lab(s, x): s.l.append(x + ":")
    def raw(s, x): s.l.append(x)
    def text(s): return "\n".join(s.l) + "\n"

DBG = "-d" in sys.argv
WS_DBG = 0x780000
NST = 8
def stamp(e, i, real=False):
    if not DBG: return
    e(f"s_waitcnt lgkmcnt(0)\n{'s_memrealtime' if real else 's_memtime'} s[{72+2*i}:{73+2*i}]\ns_waitcnt lgkmcnt(0)")
def stamp_init(e):
    if not DBG: return
    for i in range(2*NST): e(f"s_mov_b32 s{72+i}, 0")
def stamp_flush(e, kidx):
    if not DBG: return
    e(f"""
    s_mov_b64 exec, -1
    s_lshl_b32 s70, s2, 4
    s_add_u32 s70, s70, s{S_W}
    s_add_u32 s70, s70, {kidx*4096}
    s_lshl_b32 s70, s70, 5
    s_add_u32 s70, s70, {WS_DBG}
    v_mov_b32 v1, 0
    """)
    for i in range(NST):
        e(f"v_mov_b32 v2, s{72+2*i}\nbuffer_store_dword v2, v1, s[24:27], s70 offen offset:{4*i}\ns_nop 1")

def vr(a, n): return f"v[{a}:{a+n-1}]"
def sr(a, n): return f"s[{a}:{a+n-1}]"

def srd(e, d, b, size):
    e(f"s_mov_b32 s{d}, s{b}\ns_mov_b32 s{d+1}, s{b+1}\ns_mov_b32 s{d+2}, {size:#x}\ns_mov_b32 s{d+3}, 0x00020000")

def kernel_head(e, name):
    e.raw(f".globl {name}\n.p2align 8\n.type {name},@function\n{name}:")

def kernel_desc(name, vgpr):
    return f""".p2align 6
.amdhsa_kernel {name}
  .amdhsa_next_free_vgpr {vgpr}
  .amdhsa_next_free_sgpr 102
  .amdhsa_accum_offset {vgpr}
  .amdhsa_group_segment_fixed_size 0
  .amdhsa_kernarg_size 104
  .amdhsa_user_sgpr_count 2
  .amdhsa_user_sgpr_kernarg_segment_ptr 1
  .amdhsa_system_sgpr_workgroup_id_x 1
.end_amdhsa_kernel
"""

XOFF, WOFF, WKOFF = 0, 73728, 156672
SX, SW, SWS, SKV, SBX, SOUT = 16, 20, 24, 28, 32, 36
S_W, S_RB, S_C, S_MX, S_MW, S_T0, S_T1, S_NB, S_RBK, S_KV, S_STG = 40, 41, 42, 43, 44, 45, 46, 47, 48, 49, 50
V_LANE, V_OX, V_OW, V_T0, V_T1, V_T2, V_T3 = 1, 2, 3, 4, 5, 6, 7

def gjob_decode(e):
    e(f"""
    v_and_b32 v{V_LANE}, 63, v0
    v_lshrrev_b32 v{V_T0}, 6, v0
    s_and_b32 s{S_T0}, s2, 7
    v_readfirstlane_b32 s{S_W}, v{V_T0}
    s_lshr_b32 s{S_T1}, s2, 3
    s_lshl_b32 s{S_RB}, s{S_T0}, 2
    s_lshr_b32 s{S_T0}, s{S_T1}, 3
    s_add_u32 s{S_RB}, s{S_RB}, s{S_T0}
    s_and_b32 s{S_C}, s{S_T1}, 7
    s_and_b32 s{S_T0}, s{S_W}, 7
    s_lshl_b32 s{S_MX}, s{S_T0}, 10
    s_lshl_b32 s{S_MW}, s{S_W}, 10
    s_add_u32 s{S_MW}, s{S_MW}, {WOFF}
    v_lshrrev_b32 v{V_T0}, 3, v{V_LANE}
    s_lshl_b32 s{S_T0}, s{S_T0}, 3
    v_add_u32 v{V_T0}, s{S_T0}, v{V_T0}
    v_lshrrev_b32 v{V_T1}, 1, v{V_T0}
    v_xor_b32 v{V_T1}, v{V_T1}, v{V_LANE}
    v_and_b32 v{V_T1}, 7, v{V_T1}
    v_lshlrev_b32 v{V_T1}, 4, v{V_T1}
    s_lshl_b32 s{S_T1}, s{S_RB}, 6
    v_add_u32 v{V_T0}, s{S_T1}, v{V_T0}
    v_mul_u32_u24 v{V_T0}, 1152, v{V_T0}
    v_add_u32 v{V_OX}, v{V_T0}, v{V_T1}
    s_lshl_b32 s{S_T0}, s{S_W}, 6
    v_add_u32 v{V_T0}, s{S_T0}, v{V_LANE}
    v_mul_u32_u24 v{V_T1}, 7282, v{V_T0}
    v_lshrrev_b32 v{V_T1}, 16, v{V_T1}
    v_mul_u32_u24 v{V_T2}, 9, v{V_T1}
    v_sub_u32 v{V_T0}, v{V_T0}, v{V_T2}
    v_lshlrev_b32 v{V_T0}, 4, v{V_T0}
    v_and_b32 v{V_T2}, 48, v{V_T1}
    v_and_b32 v{V_T3}, 3, v{V_T1}
    v_lshlrev_b32 v{V_T3}, 2, v{V_T3}
    v_or_b32 v{V_T2}, v{V_T2}, v{V_T3}
    v_lshrrev_b32 v{V_T3}, 2, v{V_T1}
    v_and_b32 v{V_T3}, 3, v{V_T3}
    v_or_b32 v{V_T2}, v{V_T2}, v{V_T3}
    v_mul_u32_u24 v{V_T2}, 1152, v{V_T2}
    v_add_u32 v{V_T0}, v{V_T0}, v{V_T2}
    s_mul_i32 s{S_T0}, s{S_C}, 144
    v_add_u32 v{V_OW}, s{S_T0}, v{V_T0}
    """)

def gjob_dma(e, xsoff=None):
    for i in range(9):
        e(f"s_add_u32 m0, s{S_MX}, {XOFF + i*8192}")
        if xsoff is None:
            e(f"s_mov_b32 s{S_T0}, {i*128}")
        else:
            e(f"s_add_u32 s{S_T0}, s{xsoff}, {i*128}")
        e(f"buffer_load_dwordx4 v{V_OX}, {sr(SX,4)}, s{S_T0} offen lds")
        e(f"s_add_u32 m0, s{S_MW}, {i*9216}")
        e(f"s_mov_b32 s{S_T1}, {i*73728}")
        e(f"buffer_load_dwordx4 v{V_OW}, {sr(SW,4)}, s{S_T1} offen lds")

V_ACC = 16
V_XB = 8
V_WA, V_A1, V_KS, V_RD, V_WRAP = 12, 13, 14, 15, 32
V_XF = 36
V_WF = 52
V_P = 68
V_ST = 76
V_STA = 33
V_ROW, V_H = 34, 35

def gjob_compute_setup(e, with_kv):
    e(f"""
    ; nb = w % 3, rbk = w / 3
    s_cmp_ge_u32 s{S_W}, 3
    s_cselect_b32 s{S_RBK}, 1, 0
    s_mul_i32 s{S_T0}, s{S_RBK}, 3
    s_sub_u32 s{S_NB}, s{S_W}, s{S_T0}
    v_and_b32 v{V_ROW}, 31, v{V_LANE}
    v_lshrrev_b32 v{V_H}, 5, v{V_LANE}
    s_lshl_b32 s{S_T0}, s{S_RBK}, 5
    v_add_u32 v{V_ROW}, s{S_T0}, v{V_ROW}
    v_lshrrev_b32 v{V_T0}, 1, v{V_ROW}
    v_and_b32 v{V_T0}, 7, v{V_T0}
    v_xor_b32 v{V_T0}, v{V_T0}, v{V_H}
    v_lshlrev_b32 v{V_T1}, 7, v{V_ROW}
    """)
    for m in range(4):
        e(f"""
        v_xor_b32 v{V_T2}, {2*m}, v{V_T0}
        v_lshlrev_b32 v{V_T2}, 4, v{V_T2}
        v_add_u32 v{V_XB+m}, v{V_T1}, v{V_T2}
        """)
    e(f"""
    v_lshrrev_b32 v{V_T0}, 2, v{V_LANE}
    v_and_b32 v{V_T0}, 3, v{V_T0}              ; i>>2
    v_lshrrev_b32 v{V_T1}, 4, v{V_LANE}
    v_and_b32 v{V_T1}, 1, v{V_T1}              ; G&1
    v_lshlrev_b32 v{V_T1}, 4, v{V_T1}
    v_and_b32 v{V_T2}, 3, v{V_LANE}
    v_lshlrev_b32 v{V_T2}, 2, v{V_T2}
    v_add_u32 v{V_T1}, v{V_T1}, v{V_T2}        ; col4 = 16*(G&1) + 4*(i&3)
    v_lshlrev_b32 v{V_T2}, 1, v{V_T0}
    v_add_u32 v{V_T2}, v{V_T2}, v{V_H}         ; 2*(i>>2) + (G>>1)
    v_mul_u32_u24 v{V_T2}, 288, v{V_T2}        ; *2*144
    v_lshlrev_b32 v{V_T3}, 1, v{V_T1}
    v_add_u32 v{V_WA}, v{V_T2}, v{V_T3}
    s_lshl_b32 s{S_T0}, s{S_NB}, 6
    s_add_u32 s{S_T0}, s{S_T0}, {WOFF}
    v_add_u32 v{V_WA}, s{S_T0}, v{V_WA}
    v_mov_b32 v{V_KS}, 2304
    v_mov_b32 v{V_RD}, 144
    v_mov_b32 v{V_WRAP}, 0
    """)
    if with_kv:
        e(f"""
        s_cmp_lt_u32 s{S_C}, 2
        s_cselect_b32 s{S_KV}, 1, 0
        s_cmp_eq_u32 s{S_NB}, 2
        s_cselect_b32 s{S_KV}, s{S_KV}, 0
        s_cmp_eq_u32 s{S_W}, 2
        s_cselect_b32 s{S_STG}, s{S_KV}, 0
        v_mul_u32_u24 v{V_STA}, 40, v{V_LANE}
        v_add_u32 v{V_STA}, {WKOFF}, v{V_STA}
        s_cmp_eq_u32 s{S_KV}, 0
        s_cbranch_scc1 K1_nokv
        v_cmp_lt_u32 vcc, 7, v{V_T1}
        v_lshlrev_b32 v{V_T2}, 3, v{V_H}
        v_add_u32 v{V_T2}, v{V_T2}, v{V_T0}        ; 8*(G>>1) + (i>>2)
        v_mul_u32_u24 v{V_T2}, 40, v{V_T2}
        v_add_u32 v{V_T2}, v{V_T2}, v{V_T3}        ; + col4*2
        v_add_u32 v{V_T2}, {WKOFF - 16}, v{V_T2}
        v_cndmask_b32 v{V_WA}, v{V_WA}, v{V_T2}, vcc
        v_mov_b32 v{V_T2}, 640
        v_cndmask_b32 v{V_KS}, v{V_KS}, v{V_T2}, vcc
        v_mov_b32 v{V_T2}, 160
        v_cndmask_b32 v{V_RD}, v{V_RD}, v{V_T2}, vcc
        v_mov_b32 v{V_T2}, -5120
        v_cndmask_b32 v{V_WRAP}, v{V_WRAP}, v{V_T2}, vcc
        """)
        e.lab("K1_nokv")
    for i in range(16):
        e(f"v_mov_b32 v{V_ACC+i}, 0")

def gjob_stage_loads(e):
    e(f"""
    s_cmp_eq_u32 s{S_STG}, 0
    s_cbranch_scc1 K1_nostage
    v_mul_u32_u24 v{V_T0}, 36, v{V_LANE}
    """)
    for i in range(9):
        b = V_ST + 10 * i
        e(f"""
        s_mov_b32 s{S_T0}, {i*2304}
        buffer_load_dwordx4 {vr(b,4)}, v{V_T0}, {sr(SKV,4)}, s{S_T0} offen
        buffer_load_dwordx4 {vr(b+4,4)}, v{V_T0}, {sr(SKV,4)}, s{S_T0} offen offset:16
        buffer_load_dword v{b+8}, v{V_T0}, {sr(SKV,4)}, s{S_T0} offen offset:32
        """)
    e.lab("K1_nostage")

def gjob_mainloop(e, with_kv, pfx):
    if pfx == "K1": stamp(e, 4)
    for i in range(9):
        e(f"s_waitcnt vmcnt({2*(8-i)})")
        if with_kv:
            b = V_ST + 10 * i
            o = (i & 1) * 2560
            e(f"""
            s_cmp_eq_u32 s{S_STG}, 0
            s_cbranch_scc1 {pfx}_nost{i}
            ds_write_b64 v{V_STA}, {vr(b,2)} offset:{o}
            ds_write_b64 v{V_STA}, {vr(b+2,2)} offset:{o+8}
            ds_write_b64 v{V_STA}, {vr(b+4,2)} offset:{o+16}
            ds_write_b64 v{V_STA}, {vr(b+6,2)} offset:{o+24}
            ds_write_b32 v{V_STA}, v{b+8} offset:{o+32}
            s_waitcnt lgkmcnt(0)
            """)
            e.lab(f"{pfx}_nost{i}")
        e("s_barrier")
        if i == 0: stamp(e, 1)
        if i == 8: stamp(e, 2)
        if i == 8:
            for m in range(4):
                e(f"v_add_u32 v{V_XB+m}, 0x10000, v{V_XB+m}")
        xo = (i * 8192) & 0xffff
        for ks in range(4):
            e(f"""
            ds_read_b128 {vr(V_XF+4*ks,4)}, v{V_XB+ks} offset:{XOFF+xo}
            v_add_u32 v{V_A1}, v{V_WA}, v{V_RD}
            ds_read_b64_tr_b16 {vr(V_WF+4*ks,2)}, v{V_WA}
            ds_read_b64_tr_b16 {vr(V_WF+4*ks+2,2)}, v{V_A1}
            v_add_u32 v{V_WA}, v{V_WA}, v{V_KS}
            """)
        if i & 1:
            e(f"v_add_u32 v{V_WA}, v{V_WA}, v{V_WRAP}")
        for ks in range(4):
            e(f"s_waitcnt lgkmcnt({3*(3-ks)})")
            e(f"v_mfma_f32_32x32x16_bf16 {vr(V_ACC,16)}, {vr(V_WF+4*ks,4)}, {vr(V_XF+4*ks,4)}, {vr(V_ACC,16)}")
    e("s_nop 7\ns_nop 7")
    stamp(e, 3)

def pack16(e, acc, p):
    for j in range(8):
        e(f"v_cvt_pk_bf16_f32 v{p+j}, v{acc+2*j}, v{acc+2*j+1}")

def gen_k1(e):
    kernel_head(e, "k1_kernel")
    e(f"""
    s_cmp_ge_u32 s2, 256
    s_cbranch_scc1 K1_exit
    s_load_dwordx4 s[4:7], s[0:1], 0
    s_load_dwordx4 s[8:11], s[0:1], 16
    s_load_dwordx2 s[12:13], s[0:1], 40
    s_load_dwordx2 s[14:15], s[0:1], 96
    """)
    stamp_init(e); stamp(e, 0); stamp(e, 5, True)
    gjob_decode(e)
    e("s_waitcnt lgkmcnt(0)")
    srd(e, SX, 4, 2359296)
    srd(e, SW, 6, 663552)
    srd(e, SWS, 14, WS_END)
    srd(e, SBX, 12, 2359296)
    e(f"""
    s_cmp_eq_u32 s{S_C}, 0
    s_cselect_b32 s{SKV}, s8, s10
    s_cselect_b32 s{SKV+1}, s9, s11
    s_mov_b32 s{SKV+2}, 20736
    s_mov_b32 s{SKV+3}, 0x00020000
    s_cmp_ge_u32 s{S_W}, 6
    s_cbranch_scc1 K1_xf
    """)
    gjob_compute_setup(e, True)
    gjob_stage_loads(e)
    gjob_dma(e)
    gjob_mainloop(e, True, "K1")
    A, P = V_ACC, V_P
    e(f"""
    s_mov_b32 s{S_T0}, {QSCALE:#x}
    s_cmp_eq_u32 s{S_NB}, 2
    s_cselect_b32 s{S_T1}, 1.0, s{S_T0}
    """)
    for i in range(16):
        e(f"v_mul_f32 v{A+i}, s{S_T0 if i < 4 else S_T1}, v{A+i}")
    pack16(e, A, P)
    e(f"""
    s_lshl_b32 s{S_T0}, s{S_RB}, 6
    v_add_u32 v{V_T0}, s{S_T0}, v{V_ROW}
    v_mul_u32_u24 v{V_T0}, 1152, v{V_T0}
    v_lshlrev_b32 v{V_T1}, 4, v{V_H}
    v_add_u32 v{V_T0}, v{V_T0}, v{V_T1}
    s_mul_i32 s{S_T0}, s{S_C}, 144
    s_lshl_b32 s{S_T1}, s{S_NB}, 6
    s_add_u32 s{S_T0}, s{S_T0}, s{S_T1}
    s_cmp_eq_u32 s{S_NB}, 2
    s_cbranch_scc1 K1_nb2
    v_permlane32_swap_b32 v{P}, v{P+2}
    v_permlane32_swap_b32 v{P+1}, v{P+3}
    v_permlane32_swap_b32 v{P+4}, v{P+6}
    v_permlane32_swap_b32 v{P+5}, v{P+7}
    buffer_store_dwordx4 {vr(P,4)}, v{V_T0}, {sr(SWS,4)}, s{S_T0} offen offset:{WS_Q}
    buffer_store_dwordx4 {vr(P+4,4)}, v{V_T0}, {sr(SWS,4)}, s{S_T0} offen offset:{WS_Q+32}
    s_branch K1_end
    """)
    e.lab("K1_nb2")
    T = V_XF
    e(f"""
    v_mov_b32 v{T}, v{P}
    v_mov_b32 v{T+1}, v{P+1}
    v_mov_b32 v{T+2}, v{P+2}
    v_mov_b32 v{T+3}, v{P+3}
    s_nop 1
    v_permlane32_swap_b32 v{T}, v{T+2}
    v_permlane32_swap_b32 v{T+1}, v{T+3}
    s_mov_b32 exec_hi, 0
    buffer_store_dwordx4 {vr(T,4)}, v{V_T0}, {sr(SWS,4)}, s{S_T0} offen offset:{WS_Q}
    s_mov_b32 exec_hi, -1
    s_cmp_eq_u32 s{S_KV}, 0
    s_cbranch_scc1 K1_end
    s_lshl_b32 s{S_T0}, s{S_RB}, 1
    s_add_u32 s{S_T0}, s{S_T0}, s{S_RBK}
    s_mul_i32 s{S_T0}, s{S_T0}, {KVT}
    s_add_u32 s{S_T0}, s{S_T0}, {WS_KV}
    s_cmp_eq_u32 s{S_C}, 1
    s_cbranch_scc1 K1_vout
    v_permlane32_swap_b32 v{P+2}, v{P+4}
    v_permlane32_swap_b32 v{P+3}, v{P+5}
    v_lshlrev_b32 v{V_T0}, 4, v{V_LANE}
    v_lshlrev_b32 v{V_T1}, 2, v{V_LANE}
    buffer_store_dwordx4 {vr(P+2,4)}, v{V_T0}, {sr(SWS,4)}, s{S_T0} offen
    s_mov_b32 exec_hi, 0
    buffer_store_dword v{P+6}, v{V_T1}, {sr(SWS,4)}, s{S_T0} offen offset:1024
    s_branch K1_end
    """)
    e.lab("K1_vout")
    e(f"""
    v_and_b32 v{V_T0}, 31, v{V_LANE}
    v_lshrrev_b32 v{V_T1}, 4, v{V_T0}
    v_mul_u32_u24 v{V_T1}, 608, v{V_T1}
    v_lshrrev_b32 v{V_T2}, 2, v{V_T0}
    v_and_b32 v{V_T2}, 1, v{V_T2}
    v_mul_u32_u24 v{V_T2}, 304, v{V_T2}
    v_add_u32 v{V_T1}, v{V_T1}, v{V_T2}
    v_and_b32 v{V_T2}, 8, v{V_T0}
    v_add_u32 v{V_T1}, v{V_T1}, v{V_T2}
    v_and_b32 v{V_T2}, 3, v{V_T0}
    v_lshlrev_b32 v{V_T2}, 1, v{V_T2}
    v_add_u32 v{V_T1}, v{V_T1}, v{V_T2}
    v_lshlrev_b32 v{V_T2}, 6, v{V_H}
    v_add_u32 v{V_T2}, v{V_T1}, v{V_T2}
    v_mul_u32_u24 v{V_T3}, 288, v{V_H}
    v_add_u32 v{V_T3}, v{V_T1}, v{V_T3}
    v_mov_b32 v{V_T0}, 0x3f80
    """)
    for g in (1, 2):
        for i4 in range(4):
            reg = P + 2 * g + (i4 >> 1)
            op = "buffer_store_short_d16_hi" if (i4 & 1) else "buffer_store_short"
            addr = V_T3 if (g == 1 and i4 == 0) else V_T2
            e(f"{op} v{reg}, v{addr}, {sr(SWS,4)}, s{S_T0} offen offset:{1152 + (8*(g-1)+i4)*16}")
    e(f"""
    s_mov_b32 exec_hi, 0
    buffer_store_short v{P+6}, v{V_T1}, {sr(SWS,4)}, s{S_T0} offen offset:{1152 + 16*16}
    buffer_store_short_d16_hi v{P+6}, v{V_T1}, {sr(SWS,4)}, s{S_T0} offen offset:{1152 + 17*16}
    buffer_store_short v{V_T0}, v{V_T1}, {sr(SWS,4)}, s{S_T0} offen offset:{1152 + 4*16}
    s_branch K1_end
    """)
    e.lab("K1_xf")
    S_S, S_R0 = 51, 52
    e(f"""
    s_lshl_b32 s{S_S}, s2, 1
    s_add_u32 s{S_S}, s{S_S}, s{S_W}
    s_sub_u32 s{S_S}, s{S_S}, 6
    s_add_u32 s{S_T0}, s2, 512
    s_cmp_eq_u32 s{S_W}, 8
    s_cselect_b32 s{S_S}, s{S_T0}, s{S_S}
    ; rows: r0 = s, r1 = 2048-s, r2 = 1024-s, r3 = 1024+s
    s_mul_i32 s{S_R0}, s{S_S}, 1152
    s_sub_u32 s{S_R0+1}, {2048*1152}, s{S_R0}
    s_sub_u32 s{S_R0+2}, {1024*1152}, s{S_R0}
    s_add_u32 s{S_R0+3}, {1024*1152}, s{S_R0}
    s_cmp_eq_u32 s{S_S}, 0
    s_cselect_b32 s{S_R0+1}, {HUGE:#x}, s{S_R0+1}
    s_cselect_b32 s{S_R0+2}, {HUGE:#x}, s{S_R0+2}
    s_cmp_ge_u32 s{S_S}, 512
    s_cselect_b32 s{S_R0+2}, {HUGE:#x}, s{S_R0+2}
    s_cselect_b32 s{S_R0+3}, {HUGE:#x}, s{S_R0+3}
    s_cmp_ge_u32 s{S_S}, 513
    s_cselect_b32 s{S_R0}, {HUGE:#x}, s{S_R0}
    s_cselect_b32 s{S_R0+1}, {HUGE:#x}, s{S_R0+1}
    """)
    VF, VM, VX = 8, 9, 10
    F, M, X = 16, 32, 48
    e(f"""
    v_mov_b32 v{V_T3}, {HUGE:#x}
    v_lshlrev_b32 v{VF}, 4, v{V_LANE}
    v_sub_u32 v{VM}, {71*16}, v{VF}
    v_sub_u32 v{VX}, {72*16}, v{VF}
    v_cmp_lt_u32 vcc, 36, v{V_LANE}
    v_cndmask_b32 v{VF}, v{VF}, v{V_T3}, vcc
    v_cmp_lt_u32 vcc, 35, v{V_LANE}
    v_cndmask_b32 v{VM}, v{VM}, v{V_T3}, vcc
    v_cndmask_b32 v{VX}, v{VX}, v{V_T3}, vcc
    v_cmp_eq_u32 vcc, 0, v{V_LANE}
    v_cndmask_b32 v{VX}, v{VX}, v{V_T3}, vcc
    """)
    for r in range(4):
        e(f"""
        buffer_load_dwordx4 {vr(F+4*r,4)}, v{VF}, {sr(SBX,4)}, s{S_R0+r} offen
        buffer_load_dwordx4 {vr(M+4*r,4)}, v{VM}, {sr(SBX,4)}, s{S_R0+r} offen
        buffer_load_ushort v{X+r}, v{VX}, {sr(SBX,4)}, s{S_R0+r} offen
        """)
    gjob_dma(e)
    ops = []
    FE, FO = 56, 88
    TA, TB = 52, 53
    O = 120
    for r in range(4):
        for j in range(8):
            src = F + 4 * r + (j >> 1)
            ops.append(f"v_and_b32 v{TA}, 0xffff0000, v{src}" if (j & 1) else f"v_lshlrev_b32 v{TA}, 16, v{src}")
            if j == 0:
                ops.append(f"v_lshlrev_b32 v{TB}, 16, v{X+r}")
            else:
                el = 8 - j
                src = M + 4 * r + (el >> 1)
                ops.append(f"v_and_b32 v{TB}, 0xffff0000, v{src}" if (el & 1) else f"v_lshlrev_b32 v{TB}, 16, v{src}")
            ops.append(f"v_add_f32 v{FE+8*r+j}, v{TA}, v{TB}")
            ops.append(f"v_sub_f32 v{FO+8*r+j}, v{TA}, v{TB}")
    for j in range(8):
        ops.append(f"v_add_f32 v{TA}, v{FE+j}, v{FE+8+j}")
        ops.append(f"v_add_f32 v{TB}, v{FE+16+j}, v{FE+24+j}")
        ops.append(f"v_add_f32 v{O+j}, v{TA}, v{TB}")
        ops.append(f"v_sub_f32 v{O+8+j}, v{TA}, v{TB}")
        ops.append(f"v_sub_f32 v{TA}, v{FO+j}, v{FO+8+j}")
        ops.append(f"v_sub_f32 v{TB}, v{FO+24+j}, v{FO+16+j}")
        ops.append(f"v_add_f32 v{O+16+j}, v{TA}, v{TB}")
        ops.append(f"v_sub_f32 v{O+24+j}, v{TA}, v{TB}")
    PK = 16
    MK0, MK1 = 11, 12
    ops.append(f"v_cmp_eq_u32 vcc, 36, v{V_LANE}")
    ops.append(f"v_mov_b32 v{TA}, 0xffff")
    ops.append(f"v_mov_b32 v{TB}, 0")
    ops.append(f"v_cndmask_b32 v{MK0}, -1, v{TA}, vcc")
    ops.append(f"v_cndmask_b32 v{MK1}, -1, v{TB}, vcc")
    for g in range(4):
        for d in range(4):
            ops.append(f"v_cvt_pk_bf16_f32 v{PK+4*g+d}, v{O+8*g+2*d}, v{O+8*g+2*d+1}")
    for g in range(4):
        for d in range(4):
            ops.append(f"v_and_b32 v{PK+4*g+d}, v{PK+4*g+d}, v{MK0 if d == 0 else MK1}")
    n = len(ops); per = (n + 8) // 9
    for i in range(9):
        e(f"s_waitcnt vmcnt({2*(8-i)})\ns_barrier")
        for op in ops[i*per:(i+1)*per]:
            e(op)
    e(f"""
    s_cmp_ge_u32 s{S_S}, 544
    s_cbranch_scc1 K1_end
    s_lshr_b32 s{S_T0}, s{S_S}, 5
    s_mul_i32 s{S_T0}, s{S_T0}, {19*1024}
    s_and_b32 s{S_T1}, s{S_S}, 31
    s_lshl_b32 s{S_T1}, s{S_T1}, 4
    s_add_u32 s{S_T0}, s{S_T0}, s{S_T1}
    s_add_u32 s{S_T0}, s{S_T0}, {WS_XF}
    v_lshlrev_b32 v{V_T0}, 9, v{V_LANE}
    s_mov_b32 exec_hi, 0x3f
    """)
    for g in range(4):
        e(f"buffer_store_dwordx4 {vr(PK+4*g,4)}, v{V_T0}, {sr(SWS,4)}, s{S_T0} offen")
        if g < 3:
            e(f"s_add_u32 s{S_T0}, s{S_T0}, {17*19*1024}")
    e.lab("K1_end")
    if DBG: e("s_waitcnt vmcnt(0)")
    stamp(e, 6); stamp(e, 7, True); stamp_flush(e, 0)
    e.lab("K1_exit")
    e("s_endpgm")

SCM = 56
S_HW, S_P, S_I, S_J, S_MAT, S_B0, S_B1, S_B2 = 60, 61, 62, 63, 64, 65, 66, 67

def b_decode(e):
    e(f"""
    s_and_b32 s{S_J}, s2, 15
    s_lshr_b32 s{S_B0}, s2, 4
    s_and_b32 s{S_P}, s{S_B0}, 1
    s_lshr_b32 s{S_I}, s{S_B0}, 1
    s_lshr_b32 s{S_MAT}, s{S_HW}, 1
    """)

BB_ACC, BB_A, BB_B, BB_VA, BB_VB = 16, 32, 64, 8, 9
def bbig_kloop(e, nks=33, D=8):
    def loads(ks):
        sl = ks % D
        e(f"buffer_load_dwordx4 {vr(BB_A+4*sl,4)}, v{BB_VA}, {sr(SCM,4)}, 0 offen offset:{ks*32}")
        e(f"s_add_u32 s{S_B2}, s{S_B1}, {ks*608}")
        e(f"buffer_load_dwordx4 {vr(BB_B+4*sl,4)}, v{BB_VB}, {sr(SWS,4)}, s{S_B2} offen sc1")
    for ks in range(D):
        loads(ks)
    for ks in range(nks):
        rem = min(D - 1, nks - 1 - ks)
        e(f"s_waitcnt vmcnt({2*rem})")
        sl = ks % D
        c = "0" if ks == 0 else vr(BB_ACC, 16)
        e(f"v_mfma_f32_32x32x16_bf16 {vr(BB_ACC,16)}, {vr(BB_A+4*sl,4)}, {vr(BB_B+4*sl,4)}, {c}")
        if ks + D < nks:
            loads(ks + D)
    e("s_nop 7\ns_nop 7")

def bbig(e, pfx, XCH, XFL):
    L = V_LANE
    COL, H, T0, T1, T2, T3 = 10, 11, 4, 5, 6, 7
    AE, AM = 12, 13
    e(f"""
    v_and_b32 v{COL}, 31, v{L}
    v_lshrrev_b32 v{H}, 5, v{L}
    s_lshl_b32 s{S_B0}, s{S_I}, 6
    s_and_b32 s{S_B1}, s{S_HW}, 1
    s_lshl_b32 s{S_B1}, s{S_B1}, 5
    s_add_u32 s{S_B0}, s{S_B0}, s{S_B1}
    s_lshl_b32 s{S_B0}, s{S_B0}, 1
    s_add_u32 s{S_B0}, s{S_B0}, s{S_P}
    v_lshlrev_b32 v{T0}, 1, v{COL}
    v_add_u32 v{T0}, s{S_B0}, v{T0}
    v_lshlrev_b32 v{T0}, 12, v{T0}
    v_lshlrev_b32 v{T1}, 4, v{H}
    v_add_u32 v{BB_VA}, v{T0}, v{T1}
    ; B address
    v_min_u32 v{T0}, 18, v{COL}
    v_lshlrev_b32 v{T0}, 4, v{T0}
    v_mul_u32_u24 v{T1}, 304, v{H}
    v_add_u32 v{BB_VB}, v{T0}, v{T1}
    s_lshl_b32 s{S_B1}, s{S_MAT}, 1
    s_add_u32 s{S_B1}, s{S_B1}, s{S_P}
    s_lshl_b32 s{S_B1}, s{S_B1}, 4
    s_add_u32 s{S_B1}, s{S_B1}, s{S_J}
    s_mul_i32 s{S_B1}, s{S_B1}, {34*608}
    s_add_u32 s{S_B1}, s{S_B1}, {WS_AB}
    """)
    bbig_kloop(e)
    A = BB_ACC
    RX = 32
    e(f"""
    v_lshlrev_b32 v{T0}, 4, v{L}
    s_lshl_b32 s{S_B2}, s{S_HW}, 11
    s_add_u32 s{S_B2}, s{S_B2}, {XCH}
    v_add_u32 v{T1}, s{S_B2}, v{T0}
    s_xor_b32 s{S_B2}, s{S_HW}, 2
    s_lshl_b32 s{S_B2}, s{S_B2}, 11
    s_add_u32 s{S_B2}, s{S_B2}, {XCH}
    v_add_u32 v{T2}, s{S_B2}, v{T0}
    s_cmp_eq_u32 s{S_MAT}, 0
    s_cbranch_scc1 {pfx}_xu
    ds_write_b128 v{T1}, {vr(A,4)}
    ds_write_b128 v{T1}, {vr(A+4,4)} offset:1024
    s_branch {pfx}_xd
    """)
    e.lab(f"{pfx}_xu")
    e(f"""
    ds_write_b128 v{T1}, {vr(A+8,4)}
    ds_write_b128 v{T1}, {vr(A+12,4)} offset:1024
    """)
    e.lab(f"{pfx}_xd")
    e(f"""
    s_lshl_b32 s{S_B2}, s{S_HW}, 2
    s_add_u32 s{S_B2}, s{S_B2}, {XFL}
    v_mov_b32 v{T0}, s{S_B2}
    v_mov_b32 v{T3}, 1
    s_xor_b32 s{S_B2}, s{S_B2}, 8
    v_mov_b32 v{T1}, s{S_B2}
    s_waitcnt lgkmcnt(0)
    ds_write_b32 v{T0}, v{T3}
    """)
    e.lab(f"{pfx}_poll")
    e(f"""
    ds_read_b32 v{T3}, v{T1}
    s_waitcnt lgkmcnt(0)
    v_readfirstlane_b32 s{S_B2}, v{T3}
    s_cmp_eq_u32 s{S_B2}, 1
    s_cbranch_scc1 {pfx}_got
    s_sleep 1
    s_branch {pfx}_poll
    """)
    e.lab(f"{pfx}_got")
    e(f"""
    ds_read_b128 {vr(RX,4)}, v{T2}
    ds_read_b128 {vr(RX+4,4)}, v{T2} offset:1024
    s_mul_i32 s{S_B2}, s{S_J}, 18
    v_add_u32 v{T0}, s{S_B2}, v{COL}             ; e
    v_lshlrev_b32 v{AE}, 1, v{T0}
    v_sub_u32 v{AM}, {1152 + 1152}, v{AE}        ; (576 + 576 - e)*2
    v_add_u32 v{AE}, 1152, v{AE}
    v_mov_b32 v{T3}, {HUGE:#x}
    s_cmp_eq_u32 s{S_J}, 15
    s_cselect_b32 s{S_B2}, 18, 17
    v_cmp_lt_u32 vcc, s{S_B2}, v{COL}
    v_cndmask_b32 v{AE}, v{AE}, v{T3}, vcc
    v_cmp_lt_u32 vcc, 17, v{COL}
    v_cndmask_b32 v{AM}, v{AM}, v{T3}, vcc
    v_cmp_eq_u32 vcc, 0, v{T0}
    v_cndmask_b32 v{AM}, v{AM}, v{T3}, vcc
    s_lshl_b32 s{S_B2}, s{S_MAT}, 5
    s_add_u32 s{S_B2}, s{S_B2}, s{S_B0}
    v_lshlrev_b32 v{T0}, 3, v{H}
    v_add_u32 v{T0}, s{S_B2}, v{T0}
    v_mul_u32_u24 v{T0}, 2304, v{T0}             ; t*2304
    v_sub_u32 v{T1}, {2048*2304}, v{T0}          ; (N-t)*2304
    v_add_u32 v40, v{T0}, v{AE}
    v_add_u32 v41, v{T0}, v{AM}
    v_add_u32 v42, v{T1}, v{AE}
    v_add_u32 v43, v{T1}, v{AM}
    s_waitcnt lgkmcnt(0)
    s_cmp_eq_u32 s{S_MAT}, 0
    s_cbranch_scc1 {pfx}_cu
    """)
    DF, SM = 48, 56
    for i in range(8):
        e(f"v_sub_f32 v{DF+i}, v{RX+i}, v{A+8+i}\nv_add_f32 v{SM+i}, v{RX+i}, v{A+8+i}")
    e(f"s_branch {pfx}_cd")
    e.lab(f"{pfx}_cu")
    for i in range(8):
        e(f"v_sub_f32 v{DF+i}, v{A+i}, v{RX+i}\nv_add_f32 v{SM+i}, v{A+i}, v{RX+i}")
    e.lab(f"{pfx}_cd")
    PK = 64
    for i in range(8):
        e(f"v_cvt_pk_bf16_f32 v{PK+i}, v{DF+i}, v{SM+i}")
    for i in range(8):
        ro = (8 * (i >> 2) + (i & 3)) * 2 * 2304
        e(f"""
        s_mov_b32 s{S_B2}, {ro}
        buffer_store_short v{PK+i}, v40, {sr(SOUT,4)}, s{S_B2} offen
        buffer_store_short_d16_hi v{PK+i}, v41, {sr(SOUT,4)}, s{S_B2} offen
        v_subrev_u32 v44, s{S_B2}, v42
        v_subrev_u32 v45, s{S_B2}, v43
        buffer_store_short_d16_hi v{PK+i}, v44, {sr(SOUT,4)}, 0 offen
        buffer_store_short v{PK+i}, v45, {sr(SOUT,4)}, 0 offen
        """)
    e(f"""
    s_cmp_eq_u32 s{S_P}, 0
    s_cbranch_scc0 {pfx}_done
    s_cmp_eq_u32 s{S_I}, 7
    s_cbranch_scc0 {pfx}_done
    s_cmp_eq_u32 s{S_HW}, 1
    s_cbranch_scc0 {pfx}_done
    v_add_u32 v{BB_VA}, {64*4096}, v{BB_VA}
    s_waitcnt vmcnt(0)
    """)
    bbig_kloop(e)
    e(f"""
    v_cvt_pk_bf16_f32 v{PK}, v{A}, v{A}
    s_mov_b32 s{S_B2}, {1024*2304}
    s_mov_b32 exec_hi, 0
    buffer_store_short v{PK}, v{AE}, {sr(SOUT,4)}, s{S_B2} offen
    buffer_store_short v{PK}, v{AM}, {sr(SOUT,4)}, s{S_B2} offen
    s_mov_b32 exec_hi, -1
    """)
    e.lab(f"{pfx}_done")

def gen_k3(e):
    kernel_head(e, "k3_kernel")
    e(f"""
    s_cmp_ge_u32 s2, 256
    s_cbranch_scc1 K3_exit
    s_load_dwordx2 s[6:7], s[0:1], 32
    s_load_dwordx4 s[8:11], s[0:1], 48
    s_load_dwordx2 s[12:13], s[0:1], 80
    s_load_dwordx2 s[14:15], s[0:1], 96
    """)
    stamp_init(e); stamp(e, 0); stamp(e, 5, True)
    gjob_decode(e)
    e("s_waitcnt lgkmcnt(0)")
    srd(e, SX, 14, WS_END)
    srd(e, SW, 6, 663552)
    srd(e, SWS, 14, WS_END)
    srd(e, SOUT, 12, 2048 * 2304)
    S_XO = 51
    e(f"s_mov_b32 s{S_XO}, {WS_O}")
    gjob_dma(e, S_XO)
    e(f"""
    s_cmp_ge_u32 s{S_W}, 6
    s_cbranch_scc1 K3_aux
    """)
    gjob_compute_setup(e, False)
    gjob_mainloop(e, False, "K3")
    A, P = V_ACC, V_P
    pack16(e, A, P)
    e(f"""
    s_lshl_b32 s{S_T0}, s{S_RB}, 6
    v_add_u32 v{V_T0}, s{S_T0}, v{V_ROW}
    v_mul_u32_u24 v{V_T0}, 2304, v{V_T0}
    v_lshlrev_b32 v{V_T1}, 4, v{V_H}
    v_add_u32 v{V_T0}, v{V_T0}, v{V_T1}
    s_mul_i32 s{S_T0}, s{S_C}, 144
    s_lshl_b32 s{S_T1}, s{S_NB}, 6
    s_add_u32 s{S_T0}, s{S_T0}, s{S_T1}
    v_permlane32_swap_b32 v{P}, v{P+2}
    v_permlane32_swap_b32 v{P+1}, v{P+3}
    v_permlane32_swap_b32 v{P+4}, v{P+6}
    v_permlane32_swap_b32 v{P+5}, v{P+7}
    s_cmp_eq_u32 s{S_NB}, 2
    s_cbranch_scc1 K3_nb2
    buffer_store_dwordx4 {vr(P,4)}, v{V_T0}, {sr(SOUT,4)}, s{S_T0} offen
    buffer_store_dwordx4 {vr(P+4,4)}, v{V_T0}, {sr(SOUT,4)}, s{S_T0} offen offset:32
    s_branch K3_bb
    """)
    e.lab("K3_nb2")
    e(f"""
    s_mov_b32 exec_hi, 0
    buffer_store_dwordx4 {vr(P,4)}, v{V_T0}, {sr(SOUT,4)}, s{S_T0} offen
    s_mov_b32 exec_hi, -1
    """)
    e.lab("K3_bb")
    e(f"""
    s_barrier
    s_cmp_ge_u32 s{S_W}, 4
    s_cbranch_scc1 K3_end
    v_mov_b32 v{V_T0}, {WKOFF}
    v_lshlrev_b32 v{V_T1}, 2, v{V_LANE}
    v_add_u32 v{V_T0}, v{V_T0}, v{V_T1}
    v_mov_b32 v{V_T1}, 0
    ds_write_b32 v{V_T0}, v{V_T1}
    s_waitcnt lgkmcnt(0)
    s_barrier
    s_mov_b32 s{S_HW}, s{S_W}
    """)
    b_decode(e)
    e(f"""
    s_cmp_eq_u32 s{S_MAT}, 0
    s_cselect_b32 s{SCM}, s8, s10
    s_cselect_b32 s{SCM+1}, s9, s11
    s_mov_b32 s{SCM+2}, {2048*4096}
    s_mov_b32 s{SCM+3}, 0x00020000
    s_waitcnt vmcnt(0)
    """)
    stamp(e, 4)
    bbig(e, "K3B", 0, WKOFF)
    e("s_branch K3_end")
    e.lab("K3_aux")
    for i in range(9):
        e(f"s_waitcnt vmcnt({2*(8-i)})\ns_barrier")
    e.lab("K3_end")
    if DBG: e("s_waitcnt vmcnt(0)")
    stamp(e, 6); stamp(e, 7, True); stamp_flush(e, 2)
    e.lab("K3_exit")
    e("s_endpgm")

def gen_k2(e):
    kernel_head(e, "k2_kernel")
    L = V_LANE
    e(f"""
    s_cmp_ge_u32 s2, 256
    s_cbranch_scc1 K2_exit
    s_load_dwordx4 s[8:11], s[0:1], 64
    s_load_dwordx2 s[14:15], s[0:1], 96
    v_and_b32 v{L}, 63, v0
    v_lshrrev_b32 v2, 6, v0
    s_nop 0
    v_readfirstlane_b32 s{S_W}, v2
    s_waitcnt lgkmcnt(0)
    """)
    stamp_init(e); stamp(e, 0); stamp(e, 5, True)
    srd(e, SWS, 14, WS_END)
    e(f"""
    s_cmp_ge_u32 s{S_W}, 8
    s_cbranch_scc1 K2_helper
    """)
    S0, S1, O, P = 16, 32, 48, 64
    Q1, Q2, KA, KB, VA, VB = 72, 76, 80, 84, 88, 92
    AKA, AKB, AV = 8, 9, 10
    T0, T1, T2, T3, H, COL = 2, 3, 4, 5, 6, 7
    S_ROW, S_IT, S_FB, S_N = 51, 52, 53, 54
    e(f"""
    v_and_b32 v{COL}, 31, v{L}
    v_lshrrev_b32 v{H}, 5, v{L}
    s_lshl_b32 s{S_ROW}, s2, 3
    s_add_u32 s{S_ROW}, s{S_ROW}, s{S_W}
    s_mul_i32 s{S_ROW}, s{S_ROW}, 1152
    v_mul_u32_u24 v{T0}, 36, v{COL}
    v_lshlrev_b32 v{T1}, 4, v{H}
    v_add_u32 v{T1}, v{T0}, v{T1}
    buffer_load_dwordx4 {vr(Q1,4)}, v{T1}, {sr(SWS,4)}, s{S_ROW} offen offset:{WS_Q}
    buffer_load_dword v{Q2}, v{T0}, {sr(SWS,4)}, s{S_ROW} offen offset:{WS_Q+32}
    ; K/V fill
    v_lshlrev_b32 v{T2}, 4, v{L}
    s_lshl_b32 s{S_T0}, s{S_W}, 10
    s_add_u32 s{S_T1}, s{S_T0}, {WS_KV}
    """)
    for i in range(19):
        e(f"s_add_u32 m0, s{S_T0}, {i*8192}")
        if i:
            e(f"s_add_u32 s{S_T1}, s{S_T1}, 8192")
        else:
            e("s_nop 0")
        e(f"buffer_load_dwordx4 v{T2}, {sr(SWS,4)}, s{S_T1} offen lds")
    stamp(e, 4)
    e(f"""
    v_lshlrev_b32 v{AKA}, 4, v{L}
    v_lshlrev_b32 v{AKB}, 2, v{COL}
    v_add_u32 v{AKB}, 1024, v{AKB}
    v_subrev_u32 v{T0}, 16, v{COL}
    v_cmp_lt_u32 vcc, 18, v{COL}
    v_cndmask_b32 v{T0}, v{COL}, v{T0}, vcc
    v_cmp_eq_u32 vcc, 4, v{COL}
    v_cndmask_b32 v{T0}, v{T0}, 18, vcc
    v_cmp_eq_u32 vcc, 18, v{COL}
    v_cndmask_b32 v{T0}, v{T0}, 4, vcc
    v_cmp_eq_u32 vcc, 22, v{COL}
    v_cndmask_b32 v{T0}, v{T0}, 4, vcc
    v_lshlrev_b32 v{T0}, 4, v{T0}
    v_mul_u32_u24 v{T1}, 304, v{H}
    v_add_u32 v{AV}, v{T0}, v{T1}
    v_add_u32 v{AV}, 1152, v{AV}
    v_mov_b32 v{KB+1}, 0x3f803f80
    v_mov_b32 v{Q2+1}, 0
    s_mov_b32 s{S_FB}, 0
    s_mov_b32 s{S_N}, 1
    s_waitcnt vmcnt(15)
    v_cmp_gt_u32 vcc, 32, v{L}
    v_cndmask_b32 v{Q2}, 0, v{Q2}, vcc
    s_barrier
    """)
    stamp(e, 1)
    e.lab("K2_pass1")
    MX = 11
    e(f"""
    v_mov_b32 v{MX}, 0xff800000
    v_mov_b32 v{Q2+1}, 0
    v_mov_b32 v{T0}, v{AKA}
    v_mov_b32 v{T1}, v{AKB}
    s_mov_b32 s{S_IT}, s{S_N}
    """)
    e.lab("K2_p1loop")
    e(f"""
    ds_read_b128 {vr(KA,4)}, v{T0}
    ds_read_b32 v{KB}, v{T1}
    v_add_u32 v{T0}, {KVT}, v{T0}
    v_add_u32 v{T1}, {KVT}, v{T1}
    s_waitcnt lgkmcnt(0)
    v_mfma_f32_32x32x16_bf16 {vr(S0,16)}, {vr(KA,4)}, {vr(Q1,4)}, 0
    v_mfma_f32_32x32x8_bf16 {vr(S0,16)}, {vr(KB,2)}, {vr(Q2,2)}, {vr(S0,16)}
    s_nop 7
    s_nop 7
    """)
    for i in range(8):
        e(f"v_max3_f32 v{MX}, v{MX}, v{S0+2*i}, v{S0+2*i+1}")
    e(f"""
    s_sub_u32 s{S_IT}, s{S_IT}, 1
    s_cmp_lg_u32 s{S_IT}, 0
    s_cbranch_scc1 K2_p1loop
    v_mov_b32 v{T0}, v{MX}
    s_nop 1
    v_permlane32_swap_b32 v{MX}, v{T0}
    s_nop 1
    v_max_f32 v{MX}, v{MX}, v{T0}
    s_cmp_eq_u32 s{S_FB}, 0
    s_cselect_b32 s{S_T0}, 0x42000000, 0
    v_add_f32 v{MX}, s{S_T0}, v{MX}
    v_sub_f32 v{T0}, 0, v{MX}                    ; t = -m
    v_and_b32 v{T1}, 0xffff0000, v{T0}           ; hi
    v_sub_f32 v{T0}, v{T0}, v{T1}
    v_and_b32 v{T2}, 0xffff0000, v{T0}           ; mid
    v_sub_f32 v{T0}, v{T0}, v{T2}
    v_lshrrev_b32 v{T1}, 16, v{T1}
    v_or_b32 v{T1}, v{T1}, v{T2}
    v_lshrrev_b32 v{T0}, 16, v{T0}
    v_cmp_gt_u32 vcc, 32, v{L}
    v_cndmask_b32 v{Q2+1}, v{T0}, v{T1}, vcc
    """)
    stamp(e, 2)
    LA, LB, LV = 12, 13, 14
    e(f"""
    v_mov_b32 v{LA}, v{AKA}
    v_mov_b32 v{LB}, v{AKB}
    v_mov_b32 v{LV}, v{AV}
    ds_read_b128 {vr(KA,4)}, v{LA}
    ds_read_b32 v{KB}, v{LB}
    """)
    for i in range(16):
        e(f"v_mov_b32 v{O+i}, 0")
    e(f"""
    s_waitcnt lgkmcnt(0)
    v_mfma_f32_32x32x16_bf16 {vr(S0,16)}, {vr(KA,4)}, {vr(Q1,4)}, 0
    v_mfma_f32_32x32x8_bf16 {vr(S0,16)}, {vr(KB,2)}, {vr(Q2,2)}, {vr(S0,16)}
    s_nop 3
    ds_read_b128 {vr(KA,4)}, v{LA} offset:{KVT}
    ds_read_b32 v{KB}, v{LB} offset:{KVT}
    ds_read_b128 {vr(VA,4)}, v{LV}
    ds_read_b128 {vr(VB,4)}, v{LV} offset:608
    s_mov_b32 s{S_IT}, 0
    s_nop 7
    """)
    e.lab("K2_loop")
    for t in range(8):
        SC, SN = (S0, S1) if t % 2 == 0 else (S1, S0)
        ex = lambda i: e(f"v_exp_f32 v{SC+i}, v{SC+i}")
        cv = lambda j: e(f"v_cvt_pk_bf16_f32 v{P+j}, v{SC+2*j}, v{SC+2*j+1}")
        e("s_waitcnt lgkmcnt(2)")
        e(f"v_mfma_f32_32x32x16_bf16 {vr(SN,16)}, {vr(KA,4)}, {vr(Q1,4)}, 0")
        for i in range(4): ex(i)
        e(f"v_mfma_f32_32x32x8_bf16 {vr(SN,16)}, {vr(KB,2)}, {vr(Q2,2)}, {vr(SN,16)}")
        ex(4); ex(5)
        e(f"ds_read_b128 {vr(KA,4)}, v{LA} offset:{(t+2)*KVT}")
        e(f"ds_read_b32 v{KB}, v{LB} offset:{(t+2)*KVT}")
        ex(6); ex(7)
        for j in range(4): cv(j)
        ex(8); ex(9)
        e("s_waitcnt lgkmcnt(3)")
        e(f"v_mfma_f32_32x32x16_bf16 {vr(O,16)}, {vr(VA,4)}, {vr(P,4)}, {vr(O,16)}")
        ex(10); ex(11)
        e(f"ds_read_b128 {vr(VA,4)}, v{LV} offset:{(t+1)*KVT}")
        for i in range(12, 16): ex(i)
        for j in range(4, 8): cv(j)
        e("s_waitcnt lgkmcnt(3)")
        e("s_nop 0")
        e(f"v_mfma_f32_32x32x16_bf16 {vr(O,16)}, {vr(VB,4)}, {vr(P+4,4)}, {vr(O,16)}")
        e("s_nop 1")
        e(f"ds_read_b128 {vr(VB,4)}, v{LV} offset:{(t+1)*KVT+608}")
    e(f"""
    v_add_u32 v{LA}, {8*KVT}, v{LA}
    v_add_u32 v{LB}, {8*KVT}, v{LB}
    v_add_u32 v{LV}, {8*KVT}, v{LV}
    s_add_u32 s{S_IT}, s{S_IT}, 1
    s_or_b32 s{S_T0}, s{S_FB}, s{S_IT}
    s_cmp_lg_u32 s{S_T0}, 1
    s_cbranch_scc1 K2_nobar
    s_waitcnt vmcnt(0)
    s_barrier
    """)
    e.lab("K2_nobar")
    e(f"""
    s_cmp_lt_u32 s{S_IT}, 8
    s_cbranch_scc1 K2_loop
    s_waitcnt lgkmcnt(0)
    s_nop 7
    s_nop 7
    s_cmp_lg_u32 s{S_FB}, 0
    s_cbranch_scc1 K2_fin
    v_mov_b32 v{T0}, 0x7b800000
    v_cmp_nlt_f32 vcc, v{O+10}, v{T0}
    s_mov_b64 s[56:57], vcc
    v_mov_b32 v{T1}, 0x207
    """)
    for i in list(range(8)) + [8, 9]:
        e(f"v_cmp_class_f32 vcc, v{O+i}, v{T1}")
        if i >= 8:
            e("s_mov_b32 vcc_hi, 0")
        e("s_or_b64 s[56:57], s[56:57], vcc")
    e(f"""
    s_cmp_eq_u64 s[56:57], 0
    s_cbranch_scc1 K2_fin
    s_mov_b32 s{S_FB}, 2
    s_mov_b32 s{S_N}, 64
    s_branch K2_pass1
    """)
    e.lab("K2_fin")
    stamp(e, 3)
    e(f"v_rcp_f32 v{T0}, v{O+10}\ns_nop 1")
    for i in range(10):
        e(f"v_mul_f32 v{O+i}, v{O+i}, v{T0}")
    for j in range(5):
        e(f"v_cvt_pk_bf16_f32 v{P+j}, v{O+2*j}, v{O+2*j+1}")
    e(f"""
    v_mul_u32_u24 v{T0}, 36, v{COL}
    v_lshlrev_b32 v{T1}, 3, v{H}
    v_add_u32 v{T1}, v{T0}, v{T1}
    s_add_u32 s{S_ROW}, s{S_ROW}, {WS_O}
    buffer_store_dwordx2 {vr(P,2)}, v{T1}, {sr(SWS,4)}, s{S_ROW} offen
    buffer_store_dwordx2 {vr(P+2,2)}, v{T1}, {sr(SWS,4)}, s{S_ROW} offen offset:16
    s_mov_b32 exec_hi, 0
    buffer_store_dword v{P+4}, v{T0}, {sr(SWS,4)}, s{S_ROW} offen offset:32
    s_branch K2_end
    """)
    e.lab("K2_helper")
    e(f"s_sub_u32 s{S_HW}, s{S_W}, 8")
    b_decode(e)
    SD = SCM
    S_SB = 68
    ACC, FA, FB, VAa, VBb = 16, 32, 32 + 76 - 12, 8, 9
    D = 10
    FA, FB = 32, 32 + 4 * D
    e(f"""
    s_cmp_eq_u32 s{S_MAT}, 0
    s_cselect_b32 s{SD}, s8, s10
    s_cselect_b32 s{SD+1}, s9, s11
    s_mov_b32 s{SD+2}, 663552
    s_mov_b32 s{SD+3}, 0x00020000
    v_and_b32 v{COL}, 31, v{L}
    v_lshrrev_b32 v{H}, 5, v{L}
    v_lshlrev_b32 v{VAa}, 4, v{L}
    v_min_u32 v{T0}, 18, v{COL}
    s_mul_i32 s{S_B0}, s{S_J}, 18
    v_add_u32 v{T1}, s{S_B0}, v{T0}
    v_mul_u32_u24 v{T1}, 1152, v{T1}
    v_lshlrev_b32 v{T2}, 4, v{H}
    v_add_u32 v{VBb}, v{T1}, v{T2}
    v_lshlrev_b32 v{T0}, 4, v{COL}
    v_mul_u32_u24 v{T1}, 304, v{H}
    v_add_u32 v10, v{T0}, v{T1}
    v_mov_b32 v{T3}, {HUGE:#x}
    v_cmp_lt_u32 vcc, 18, v{COL}
    v_cndmask_b32 v10, v10, v{T3}, vcc
    s_lshl_b32 s{S_SB}, s{S_I}, 1
    s_and_b32 s{S_B0}, s{S_HW}, 1
    s_add_u32 s{S_SB}, s{S_SB}, s{S_B0}
    s_barrier
    s_barrier
    """)
    stamp(e, 1)
    e.lab("K2_bs")
    e(f"""
    s_lshl_b32 s{S_B0}, s{S_MAT}, 1
    s_add_u32 s{S_B0}, s{S_B0}, s{S_P}           ; G
    s_mul_i32 s{S_B1}, s{S_B0}, 17
    s_add_u32 s{S_B1}, s{S_B1}, s{S_SB}
    s_mul_i32 s{S_B1}, s{S_B1}, {19*1024}
    s_add_u32 s{S_B1}, s{S_B1}, {WS_XF}
    """)
    def loads(ks):
        sl = ks % D
        e(f"s_add_u32 s{S_B2}, s{S_B1}, {ks*1024}")
        e(f"buffer_load_dwordx4 {vr(FA+4*sl,4)}, v{VAa}, {sr(SWS,4)}, s{S_B2} offen")
        e(f"buffer_load_dwordx4 {vr(FB+4*sl,4)}, v{VBb}, {sr(SD,4)}, 0 offen offset:{ks*32}")
    for ks in range(D): loads(ks)
    for ks in range(19):
        rem = min(D - 1, 18 - ks)
        e(f"s_waitcnt vmcnt({2*rem})")
        sl = ks % D
        c = "0" if ks == 0 else vr(ACC, 16)
        e(f"v_mfma_f32_32x32x16_bf16 {vr(ACC,16)}, {vr(FA+4*sl,4)}, {vr(FB+4*sl,4)}, {c}")
        if ks + D < 19: loads(ks + D)
    e("s_nop 7\ns_nop 7")
    PK = 112
    pack16(e, ACC, PK)
    e(f"""
    s_lshl_b32 s{S_B0}, s{S_B0}, 4
    s_add_u32 s{S_B0}, s{S_B0}, s{S_J}
    s_mul_i32 s{S_B0}, s{S_B0}, 34
    s_lshl_b32 s{S_B2}, s{S_SB}, 1
    s_add_u32 s{S_B0}, s{S_B0}, s{S_B2}
    s_mul_i32 s{S_B0}, s{S_B0}, 608
    s_add_u32 s{S_B0}, s{S_B0}, {WS_AB}
    v_permlane32_swap_b32 v{PK}, v{PK+2}
    v_permlane32_swap_b32 v{PK+1}, v{PK+3}
    v_permlane32_swap_b32 v{PK+4}, v{PK+6}
    v_permlane32_swap_b32 v{PK+5}, v{PK+7}
    buffer_store_dwordx4 {vr(PK,4)}, v10, {sr(SWS,4)}, s{S_B0} offen sc1
    buffer_store_dwordx4 {vr(PK+4,4)}, v10, {sr(SWS,4)}, s{S_B0} offen offset:608 sc1
    s_cmp_eq_u32 s{S_SB}, 15
    s_cbranch_scc0 K2_end
    s_mov_b32 s{S_SB}, 16
    s_waitcnt vmcnt(0)
    s_branch K2_bs
    """)
    e.lab("K2_end")
    if DBG: e("s_waitcnt vmcnt(0)")
    stamp(e, 6); stamp(e, 7, True); stamp_flush(e, 1)
    e.lab("K2_exit")
    e("s_endpgm")

def main():
    hdr = open("concat_heads__grouped_kv_mqa__spectral_fnet__prompt.s.ref").read().split("\n")
    hdr = [l for l in hdr if l.startswith(";") and "@launch" not in l and "Override launch" not in l and "grid=ceil" not in l]
    e = E()
    for l in hdr: e.raw(l)
    e.raw("; @launch kernel=k1_kernel grid=(256,1,1) block=(576,1,1) lds=163840")
    e.raw("; @launch kernel=k2_kernel grid=(256,1,1) block=(768,1,1) lds=163840")
    e.raw("; @launch kernel=k3_kernel grid=(256,1,1) block=(576,1,1) lds=163840")
    e.raw('.amdgcn_target "amdgcn-amd-amdhsa--gfx950"\n.text')
    gen_k1(e); gen_k2(e); gen_k3(e)
    e.raw('.section .rodata,"a"')
    e.raw(kernel_desc("k1_kernel", 168)); e.raw(kernel_desc("k2_kernel", 128)); e.raw(kernel_desc("k3_kernel", 128))
    out = sys.argv[1] if len(sys.argv) > 1 and not sys.argv[1].startswith("-") else "concat_heads__grouped_kv_mqa__spectral_fnet__prompt.s"
    lines = e.text().split("\n")
    import hazard
    n = hazard.pad(lines, verbose="-v" in sys.argv)
    print("inserted pads:", n)
    open(out, "w").write("\n".join(lines))

main()
```
